```python
import torch

def _softmax(x, axis=-1):
    return torch.softmax(x, dim=axis)
def _gelu(x):
    return torch.nn.functional.gelu(x, approximate="tanh")
def _silu(x):
    return torch.nn.functional.silu(x)
def _sigmoid(x):
    return torch.sigmoid(x)
def _layernorm(x, axis=-1, eps=1e-5):
    m = x.mean(dim=axis, keepdim=True)
    v = x.var(dim=axis, keepdim=True, unbiased=False)
    return (x - m) / torch.sqrt(v + eps)
def _scatter_add(tgt, idx, src, axis=0):
    return tgt.clone().index_add_(axis, idx, src)
def _segment_sum(src, seg, n):
    out = torch.zeros((n,) + src.shape[1:], dtype=src.dtype)
    return out.index_add_(0, seg, src)
def _pad(x, pw):
    flat = tuple(v for pair in reversed(pw) for v in pair)
    return torch.nn.functional.pad(x, flat)

kernel_name = 'gated_mix__ssm_conv_s4__ssm_conv_h3__prompt'

def setup_inputs():

    _w = (lambda a: (lambda t: t.to(torch.bfloat16) if t.is_floating_point() else t)(torch.as_tensor(a)))
    def _A_setup():
        B, L, D, N = 1, 2048, 512, 128
        A_re = -(lambda _x: torch.exp(torch.as_tensor(_x)))((lambda *s: torch.randn(*s, dtype=torch.bfloat16) * 6.4)(D, N))
        A_im = torch.pi * (lambda *s: torch.randn(*s, dtype=torch.bfloat16) * 0.05)(D, N)
        B_re = (lambda *s: torch.randn(*s, dtype=torch.bfloat16) * 0.1)(D, N)
        B_im = (lambda *s: torch.randn(*s, dtype=torch.bfloat16) * 0.1)(D, N)
        C_re = (lambda *s: torch.randn(*s, dtype=torch.bfloat16) * 0.1)(D, N)
        C_im = (lambda *s: torch.randn(*s, dtype=torch.bfloat16) * 0.1)(D, N)
        log_dt = (lambda *s: torch.randn(*s, dtype=torch.bfloat16) * 0.05)(D) * 0.5 - 4.0
        Dskip = (lambda *s: torch.randn(*s, dtype=torch.bfloat16) * 0.05)(D)
        return {
            "u": _w((lambda *s: torch.randn(*s, dtype=torch.bfloat16) * 0.05)(B, L, D)),
            "A_re": _w(A_re),
            "A_im": _w(A_im),
            "B_re": _w(B_re),
            "B_im": _w(B_im),
            "C_re": _w(C_re),
            "C_im": _w(C_im),
            "log_dt": _w(log_dt),
            "Dskip": _w(Dskip),
        }
    _A_in = _A_setup()

    def _B_setup():
        B, S, D = 1, 2048, 512
        ks = 4
        return {
            "q": _w((lambda *s: torch.randn(*s, dtype=torch.bfloat16) * 0.05)(B, S, D)),
            "k": _w((lambda *s: torch.randn(*s, dtype=torch.bfloat16) * 0.4)(B, S, D)),
            "v": _w((lambda *s: torch.randn(*s, dtype=torch.bfloat16) * 0.4)(B, S, D)),
            "shift_k": _w((lambda *s: torch.randn(*s, dtype=torch.bfloat16) * 0.4)(D, ks) * 0.5),
            "ssm_k": _w((lambda *s: torch.randn(*s, dtype=torch.bfloat16) * 0.4)(D, S) * (1.0 / S ** 0.5)),
            "ssm_D": _w((lambda *s: torch.randn(*s, dtype=torch.bfloat16) * 0.4)(D)),
        }
    _B_in = _B_setup()

    return {
        "A_u": _A_in["u"],
        "A_A_re": _A_in["A_re"],
        "A_A_im": _A_in["A_im"],
        "A_B_re": _A_in["B_re"],
        "A_B_im": _A_in["B_im"],
        "A_C_re": _A_in["C_re"],
        "A_C_im": _A_in["C_im"],
        "A_log_dt": _A_in["log_dt"],
        "A_Dskip": _A_in["Dskip"],
        "B_q": _B_in["q"],
        "B_k": _B_in["k"],
        "B_v": _B_in["v"],
        "B_shift_k": _B_in["shift_k"],
        "B_ssm_k": _B_in["ssm_k"],
        "B_ssm_D": _B_in["ssm_D"],
        "gate_w": _w((lambda *s: torch.randn(*s, dtype=torch.bfloat16) * 0.05)(512) * 16.0),
    }

def reference(A_u, A_A_re, A_A_im, A_B_re, A_B_im, A_C_re, A_C_im, A_log_dt, A_Dskip, B_q, B_k, B_v, B_shift_k, B_ssm_k, B_ssm_D, gate_w):
    def _A_ref(u, A_re, A_im, B_re, B_im, C_re, C_im, log_dt, Dskip):
        Bsz, L, D = u.shape
        dt = torch.exp(log_dt)[:, None]
        A = A_re + 1j * A_im
        Bc = B_re + 1j * B_im
        Cc = C_re + 1j * C_im
        logdA = dt * A
        dB = dt * Bc
        l = (lambda x, dt: x.to(dt))(torch.arange(L), A_re.dtype)
        P = torch.exp(logdA[:, :, None] * l[None, None, :])
        K = torch.einsum("dn,dnl,dn->dl", Cc, P, dB).real
        L2 = 2 * L
        Kp = _pad(K, ((0, 0), (0, L)))
        up = (lambda x, *d: x.permute(*d))(u, 0, 2, 1)
        up = _pad(up, ((0, 0), (0, 0), (0, L)))
        Kf = (lambda x, axes=(-2,-1): torch.fft.rfft2(x.float(), dim=axes))(Kp[:, None, :], axes=(-2, -1))
        Uf = (lambda x, axes=(-2,-1): torch.fft.rfft2(x.float(), dim=axes))(up[:, :, None, :], axes=(-2, -1))
        Yf = Uf * Kf[None, :, :, :]
        y = (lambda x, s, axes=(-2,-1): torch.fft.irfft2(x, s=s, dim=axes).to(torch.bfloat16))(Yf, (1, L2), axes=(-2, -1))[:, :, 0, :L]
        y = (lambda x, *d: x.permute(*d))(y, 0, 2, 1) + u * Dskip[None, None, :]
        return y

    def _B_ref(q, k, v, shift_k, ssm_k, ssm_D):
        B, S, D = q.shape
        ks = shift_k.shape[-1]
        k_pad = _pad(k, ((0, 0), (ks - 1, 0), (0, 0)))
        k_shift = torch.zeros_like(k)
        for t in range(ks):
            k_shift = k_shift + k_pad[:, t:t + S, :] * shift_k[:, ks - 1 - t][None, None, :]
        kv = k_shift * v
        L = 2 * S
        kv_pad = _pad(kv, ((0, 0), (0, S), (0, 0)))
        kf_pad = _pad(ssm_k, ((0, 0), (0, S)))
        kv_f = (lambda x, axes=(-2,-1): torch.fft.rfft2(x.float(), dim=axes))(kv_pad[:, None, :, :], axes=(1, 2))
        kf_f = (lambda x, axes=(-2,-1): torch.fft.rfft2(x.float(), dim=axes))(kf_pad[:, None, :], axes=(1, 2))
        kf_f = (lambda x, *d: x.permute(*d))(kf_f, 1, 2, 0)
        y_f = kv_f * kf_f[None, :, :, :]
        y = (lambda x, s, axes=(-2,-1): torch.fft.irfft2(x, s=s, dim=axes).to(torch.bfloat16))(y_f, (1, L), axes=(1, 2))[:, 0, :S, :]
        y = y + kv * ssm_D[None, None, :]
        return q * y

    x = A_u
    g = _sigmoid((x * gate_w).sum(-1, keepdims=True))
    a = _A_ref(x, A_A_re, A_A_im, A_B_re, A_B_im, A_C_re, A_C_im, A_log_dt, A_Dskip)
    b = _B_ref(x, B_k, B_v, B_shift_k, B_ssm_k, B_ssm_D)
    return g * a + (1 - g) * b
```

```python
import struct, sys

NAME = "gated_mix__ssm_conv_s4__ssm_conv_h3__prompt"
OUT = "cdna_kernels/%s.s" % NAME

def f2u(x):
    return struct.unpack("<I", struct.pack("<f", x))[0]

L = []
def e(s=""):
    L.append(s)

WS_UT, WS_KVT, WS_KA, WS_G = 0x000000, 0x200000, 0x400000, 0x600000

HEADER = open("cdna_kernels/%s.s.ref" % NAME).read().split("; Override launch")[0]

def pair(r):
    return "v[%d:%d]" % (r, r + 1)
def quad(r):
    return "v[%d:%d]" % (r, r + 3)

def round_pair(dst, src, tmp, M="s7"):
    e("  v_cvt_pk_bf16_f32 v%d, v%d, v%d" % (tmp, src, src + 1))
    e("  v_lshlrev_b32 v%d, 16, v%d" % (dst, tmp))
    e("  v_and_b32 v%d, %s, v%d" % (dst + 1, M, tmp))

def gen_prep():
    e(".globl prep_kernel")
    e(".p2align 8")
    e(".type prep_kernel,@function")
    e("prep_kernel:")
    e("  s_cmp_ge_u32 s2, 768")
    e("  s_cbranch_scc1 L_prep_end")
    e("  s_mov_b32 s7, 0xffff0000")
    e("  s_cmp_ge_u32 s2, 512")
    e("  s_cbranch_scc1 L_prep_T")
    e("  s_load_dwordx16 s[16:31], s[0:1], 0")
    e("  s_load_dwordx2 s[32:33], s[0:1], 144")
    e("  v_and_b32 v1, 63, v0")
    e("  v_lshrrev_b32 v2, 6, v0")
    e("  v_and_b32 v3, 15, v1")
    e("  v_lshrrev_b32 v4, 4, v1")
    e("  v_lshlrev_b32 v5, 6, v2")
    e("  v_lshl_add_u32 v5, v4, 4, v5")
    e("  s_lshl_b32 s3, s2, 8")
    e("  v_add_u32 v5, s3, v5")
    e("  s_lshl_b32 s4, s2, 1")
    e("  v_mov_b32 v6, s4")
    e("  s_waitcnt lgkmcnt(0)")
    e("  global_load_ushort v7, v6, s[30:31]")
    for k in range(6):
        e("  global_load_dwordx4 %s, v5, s[%d:%d]" % (quad(8 + 4 * k), 18 + 2 * k, 19 + 2 * k))
    e("  v_lshrrev_b32 v32, 3, v3")
    e("  v_and_b32 v33, 7, v3")
    e("  v_lshl_add_u32 v32, v32, 7, v33")
    e("  v_cvt_f32_u32 v72, v32")
    e("  v_lshrrev_b32 v32, 2, v3")
    e("  v_and_b32 v33, 3, v3")
    e("  v_lshlrev_b32 v33, 1, v33")
    e("  v_lshl_add_u32 v32, v32, 7, v33")
    e("  v_add_u32 v32, 256, v32")
    e("  v_lshrrev_b32 v34, 1, v3")
    e("  v_and_b32 v33, 1, v3")
    e("  v_lshlrev_b32 v33, 2, v33")
    e("  v_lshl_add_u32 v34, v34, 7, v33")
    e("  v_cmp_gt_u32 vcc, 8, v3")
    e("  s_nop 1")
    e("  v_cndmask_b32 v32, v34, v32, vcc")
    e("  v_cvt_f32_u32 v73, v32")
    e("  v_lshlrev_b32 v32, 7, v3")
    e("  v_add_u32 v32, 1024, v32")
    e("  v_cvt_f32_u32 v74, v32")
    e("  v_lshlrev_b32 v32, 3, v3")
    e("  v_cvt_f32_u32 v75, v32")
    e("  v_mul_u32_u24 v36, 3072, v2")
    e("  v_lshrrev_b32 v32, 1, v4")
    e("  v_and_b32 v33, 1, v4")
    e("  v_lshlrev_b32 v33, 2, v33")
    e("  v_lshl_add_u32 v32, v32, 7, v33")
    e("  v_lshl_add_u32 v32, v3, 3, v32")
    e("  v_lshl_add_u32 v112, v32, 2, v36")
    for r in range(1, 4):
        e("  v_add_u32 v%d, %d, v112" % (112 + r, 4 * r))
    e("  v_lshlrev_b32 v32, 6, v4")
    e("  v_add_u32 v32, 256, v32")
    e("  v_lshl_add_u32 v33, v3, 2, v32")
    e("  v_lshl_add_u32 v34, v3, 1, v32")
    e("  v_cmp_gt_u32 vcc, 2, v4")
    for r in range(4):
        e("  v_add_u32 v35, %d, v33" % r)
        e("  v_add_u32 v37, %d, v34" % (32 * (r >> 1) + (r & 1)))
        e("  v_cndmask_b32 v35, v37, v35, vcc")
        e("  v_lshl_add_u32 v%d, v35, 2, v36" % (116 + r))
    e("  v_lshlrev_b32 v32, 6, v4")
    e("  v_add_u32 v32, v32, v3")
    e("  v_add_u32 v32, 512, v32")
    e("  v_lshl_add_u32 v120, v32, 2, v36")
    for r in range(1, 4):
        e("  v_add_u32 v%d, %d, v120" % (120 + r, 64 * r))
    for r in range(100, 112):
        e("  v_mov_b32 v%d, 0" % r)
    L2E = 1.4426950408889634
    L2E_HI = struct.unpack("<f", struct.pack("<I", f2u(L2E) & 0xFFFFFF00))[0]
    L2E_LO = L2E - L2E_HI
    import math
    e("  s_waitcnt vmcnt(6)")
    e("  v_lshlrev_b32 v7, 16, v7")
    e("  v_mul_f32 v32, 0x%08x, v7" % f2u(L2E_HI))
    e("  v_mul_f32 v33, 0x%08x, v7" % f2u(L2E_LO * math.log(2.0)))
    e("  v_exp_f32 v32, v32")
    e("  s_nop 0")
    e("  v_fma_f32 v32, v32, v33, v32")
    e("  v_cvt_pk_bf16_f32 v32, v32, v32")
    e("  v_lshlrev_b32 v34, 16, v32")
    e("  v_mov_b32 v35, v34")
    e("  v_mul_f32 v32, 0x%08x, v34" % f2u(L2E))
    e("  v_mul_f32 v33, 0x%08x, v34" % f2u(1.0 / (2.0 * math.pi)))
    e("  s_waitcnt vmcnt(0)")
    def unpack(dst, src, hi):
        if hi:
            e("  v_and_b32 v%d, s7, v%d" % (dst, src))
        else:
            e("  v_lshlrev_b32 v%d, 16, v%d" % (dst, src))
    for m in range(8):
        dw, hi = m >> 1, m & 1
        Z, CB = 40 + 2 * m, 56 + 2 * m
        unpack(Z, 8 + dw, hi)
        unpack(Z + 1, 12 + dw, hi)
        unpack(76, 16 + dw, hi)
        unpack(77, 20 + dw, hi)
        unpack(78, 24 + dw, hi)
        unpack(79, 28 + dw, hi)
        e("  v_pk_mul_f32 %s, %s, v[32:33]" % (pair(Z), pair(Z)))
        e("  v_pk_mul_f32 v[76:77], v[76:77], v[34:35]")
        e("  v_pk_mul_f32 v[80:81], v[78:79], v[76:77] op_sel:[0,0] op_sel_hi:[0,1]")
        e("  v_pk_fma_f32 %s, v[78:79], v[76:77], v[80:81] op_sel:[1,1,0] op_sel_hi:[1,0,1] neg_lo:[1,0,0]" % pair(CB))
    def valu_block(m):
        b = m & 1
        Z, CB = 40 + 2 * m, 56 + 2 * m
        ins = []
        lam = [("v[72:73]", 0), ("v[72:73]", 1), ("v[74:75]", 0), ("v[74:75]", 1)]
        for a in range(4):
            l, h = lam[a]
            ins.append("  v_pk_mul_f32 %s, %s, %s op_sel:[0,%d] op_sel_hi:[1,%d]" % (pair(92 + 2 * a), pair(Z), l, h, h))
        for a in range(4):
            ins.append("  v_fract_f32 v%d, v%d" % (24 + a, 93 + 2 * a))
        for a in range(4):
            ins.append("  v_exp_f32 v%d, v%d" % (16 + 2 * a, 92 + 2 * a))
            ins.append("  v_cos_f32 v%d, v%d" % (8 + 2 * a, 24 + a))
            ins.append("  v_sin_f32 v%d, v%d" % (9 + 2 * a, 24 + a))
        ins.append("  s_nop 0")
        for a in range(3):
            ins.append("  v_pk_mul_f32 %s, %s, %s op_sel:[0,0] op_sel_hi:[1,0]" % (pair(76 + 8 * b + 2 * a), pair(8 + 2 * a), pair(16 + 2 * a)))
        ins.append("  v_pk_mul_f32 v[28:29], v[14:15], v[22:23] op_sel:[0,0] op_sel_hi:[1,0]")
        ins.append("  v_pk_mul_f32 v[30:31], v[28:29], %s op_sel:[0,0] op_sel_hi:[0,1]" % pair(CB))
        ins.append("  v_pk_fma_f32 %s, v[28:29], %s, v[30:31] op_sel:[1,1,0] op_sel_hi:[1,0,1] neg_lo:[1,0,0] neg_hi:[1,0,1]" % (pair(76 + 8 * b + 6), pair(CB)))
        return ins
    def mfma_block(m):
        b = m & 1
        ins = []
        for part in range(2):
            for t in range(3):
                ins.append("  v_mfma_f32_16x16x4_f32 %s, v%d, v%d, %s" % (quad(100 + 4 * t), 76 + 8 * b + 2 * t + part, 76 + 8 * b + 6 + part, quad(100 + 4 * t)))
        return ins
    for s in valu_block(0):
        e(s)
    for m in range(8):
        mf = mfma_block(m)
        e("  s_nop 1")
        if m < 7:
            vb = valu_block(m + 1)
            per = (len(vb) + len(mf) - 1) // len(mf)
            idx = 0
            for x in mf:
                e(x)
                for s in vb[idx:idx + per]:
                    e(s)
                idx += per
            for s in vb[idx:]:
                e(s)
        else:
            for x in mf:
                e(x)
    e("  s_nop 15")
    e("  s_nop 3")
    for r in range(12):
        e("  ds_write_b32 v%d, v%d" % (112 + r, 100 + r))
    e("  s_waitcnt lgkmcnt(0)")
    e("  s_barrier")
    e("  v_lshlrev_b32 v8, 2, v0")
    for c in range(3):
        for w in range(4):
            e("  ds_read_b32 v%d, v8 offset:%d" % (10 + 4 * c + w, w * 3072 + c * 1024))
    e("  v_lshlrev_b32 v30, 3, v0")
    for ee in range(8):
        e("  v_add_u32 v31, %d, v30" % ee)
        e("  v_cvt_f32_u32 v%d, v31" % (32 + ee))
    for p in range(4):
        e("  v_cvt_pk_bf16_f32 v%d, v%d, v%d" % (40 + p, 32 + 2 * p, 33 + 2 * p))
    TB = 12288
    e("  v_cmp_gt_u32 vcc, 16, v0")
    e("  s_mov_b32 s8, 0xffff")
    for ee in range(8):
        p, hi = ee >> 1, ee & 1
        if hi:
            e("  v_lshrrev_b32 v44, 16, v%d" % (40 + p))
        else:
            e("  v_and_b32 v44, s8, v%d" % (40 + p))
        e("  v_lshlrev_b32 v44, 1, v44")
        e("  v_add_u32 v44, %d, v44" % ((TB - 34048) & 0xFFFFFFFF))
        e("  v_lshlrev_b32 v45, 4, v0")
        e("  v_add_u32 v45, %d, v45" % (TB + 2 * ee))
        e("  v_cndmask_b32 v%d, v44, v45, vcc" % (48 + ee))
    e("  s_waitcnt lgkmcnt(0)")
    for c in range(3):
        e("  v_add_f32 v%d, v%d, v%d" % (10 + 4 * c, 10 + 4 * c, 11 + 4 * c))
        e("  v_add_f32 v%d, v%d, v%d" % (12 + 4 * c, 12 + 4 * c, 13 + 4 * c))
        e("  v_add_f32 v%d, v%d, v%d" % (10 + 4 * c, 10 + 4 * c, 12 + 4 * c))
    e("  v_cvt_pk_bf16_f32 v24, v10, v14")
    e("  v_cvt_pk_bf16_f32 v25, v18, v18")
    e("  v_lshlrev_b32 v8, 1, v0")
    e("  ds_write_b16 v8, v24 offset:%d" % TB)
    e("  ds_write_b16_d16_hi v8, v24 offset:%d" % (TB + 512))
    e("  ds_write_b16 v8, v25 offset:%d" % (TB + 1024))
    e("  s_waitcnt lgkmcnt(0)")
    e("  s_barrier")
    for ee in range(8):
        e("  ds_read_u16 v%d, v%d" % (64 + ee, 48 + ee))
    e("  s_lshl_b32 s3, s2, 12")
    e("  s_add_u32 s3, s3, 0x%x" % WS_KA)
    e("  v_lshlrev_b32 v8, 4, v0")
    e("  v_add_u32 v8, s3, v8")
    e("  s_waitcnt lgkmcnt(0)")
    for p in range(4):
        e("  v_lshl_or_b32 v%d, v%d, 16, v%d" % (60 + p, 65 + 2 * p, 64 + 2 * p))
    e("  global_store_dwordx4 v8, v[60:63], s[32:33]")
    e("  s_endpgm")

    e("L_prep_T:")
    e("  s_load_dwordx2 s[16:17], s[0:1], 0")
    e("  s_load_dwordx4 s[20:23], s[0:1], 80")
    e("  s_load_dwordx2 s[24:25], s[0:1], 96")
    e("  s_load_dwordx2 s[26:27], s[0:1], 120")
    e("  s_load_dwordx2 s[28:29], s[0:1], 144")
    e("  s_sub_u32 s3, s2, 512")
    e("  s_and_b32 s4, s3, 7")
    e("  s_lshr_b32 s5, s3, 3")
    e("  s_lshr_b32 s6, s5, 3")
    e("  s_lshl_b32 s4, s4, 2")
    e("  s_add_u32 s4, s4, s6")
    e("  s_and_b32 s5, s5, 7")
    e("  s_lshl_b32 s4, s4, 6")
    e("  s_lshl_b32 s5, s5, 3")
    e("  s_add_u32 s4, s4, s5")
    e("  s_lshl_b32 s6, s4, 10")
    e("  v_lshlrev_b32 v1, 2, v0")
    e("  v_add_u32 v2, s6, v1")
    e("  v_add_u32 v3, 4096, v2")
    e("  v_subrev_u32 v4, 3072, v2")
    e("  v_lshlrev_b32 v5, 4, v0")
    e("  s_waitcnt lgkmcnt(0)")
    e("  s_mov_b32 s8, s20")
    e("  s_and_b32 s9, s21, 0xffff")
    e("  s_mov_b32 s10, 0x200000")
    e("  s_mov_b32 s11, 0x00020000")
    e("  global_load_dwordx4 v[40:43], v5, s[24:25]")
    e("  global_load_dword v44, v1, s[26:27]")
    for h in range(3):
        e("  buffer_load_dword v%d, v4, s[8:11], 0 offen offset:%d" % (26 + h, 1024 * h))
    for r in range(8):
        e("  buffer_load_dword v%d, v%d, s[8:11], 0 offen offset:%d" % (29 + r, 2 + (r >> 2), 1024 * (r & 3)))
    for r in range(8):
        e("  global_load_dword v%d, v%d, s[22:23] offset:%d" % (18 + r, 2 + (r >> 2), 1024 * (r & 3)))
    for r in range(8):
        e("  global_load_dword v%d, v%d, s[16:17] offset:%d" % (10 + r, 2 + (r >> 2), 1024 * (r & 3)))
    e("  s_add_u32 s30, s28, 0x%x" % WS_KVT)
    e("  s_addc_u32 s31, s29, 0")
    e("  s_sub_u32 s5, 2040, s4")
    e("  s_lshl_b32 s5, s5, 1")
    e("  s_add_u32 s5, s5, 4096")
    e("  v_lshlrev_b32 v6, 13, v0")
    e("  v_add_u32 v6, s5, v6")
    e("  s_mov_b32 s12, 0x05040100")
    e("  s_mov_b32 s13, 0x07060302")
    e("  s_waitcnt vmcnt(27)")
    e("  v_lshlrev_b32 v46, 16, v40")
    e("  v_lshlrev_b32 v47, 16, v42")
    e("  v_and_b32 v48, s7, v40")
    e("  v_and_b32 v49, s7, v42")
    e("  v_lshlrev_b32 v50, 16, v41")
    e("  v_lshlrev_b32 v51, 16, v43")
    e("  v_and_b32 v52, s7, v41")
    e("  v_and_b32 v53, s7, v43")
    e("  v_lshlrev_b32 v54, 16, v44")
    e("  v_and_b32 v55, s7, v44")
    e("  s_waitcnt vmcnt(16)")
    for h in range(11):
        e("  v_lshlrev_b32 v%d, 16, v%d" % (56 + 2 * h, 26 + h))
        e("  v_and_b32 v%d, s7, v%d" % (57 + 2 * h, 26 + h))
    W = [46, 48, 50, 52]
    for r in range(8):
        S = 104 + 2 * r
        e("  v_pk_mul_f32 v[78:79], %s, %s" % (pair(56 + 2 * r), pair(W[3])))
        round_pair(S, 78, 82)
        for t in range(1, 4):
            e("  v_pk_mul_f32 v[80:81], %s, %s" % (pair(56 + 2 * (r + t)), pair(W[3 - t])))
            round_pair(80, 80, 83)
            e("  v_pk_add_f32 %s, %s, v[80:81]" % (pair(S), pair(S)))
            round_pair(S, S, 82)
    e("  s_waitcnt vmcnt(8)")
    for r in range(8):
        S = 104 + 2 * r
        e("  v_lshlrev_b32 v84, 16, v%d" % (18 + r))
        e("  v_and_b32 v85, s7, v%d" % (18 + r))
        e("  v_pk_mul_f32 v[84:85], %s, v[84:85]" % pair(S))
        e("  v_cvt_pk_bf16_f32 v%d, v84, v85" % (88 + r))
    for m in range(4):
        e("  v_perm_b32 v%d, v%d, v%d, s12" % (56 + m, 88 + 6 - 2 * m, 88 + 7 - 2 * m))
        e("  v_perm_b32 v%d, v%d, v%d, s13" % (60 + m, 88 + 6 - 2 * m, 88 + 7 - 2 * m))
    e("  global_store_dwordx4 v6, v[56:59], s[30:31] offset:-4096")
    e("  global_store_dwordx4 v6, v[60:63], s[30:31]")
    e("  s_waitcnt vmcnt(2)")
    for m in range(4):
        e("  v_perm_b32 v%d, v%d, v%d, s12" % (64 + m, 10 + 6 - 2 * m, 10 + 7 - 2 * m))
        e("  v_perm_b32 v%d, v%d, v%d, s13" % (68 + m, 10 + 6 - 2 * m, 10 + 7 - 2 * m))
    e("  global_store_dwordx4 v6, v[64:67], s[28:29] offset:-4096")
    e("  global_store_dwordx4 v6, v[68:71], s[28:29]")
    for r in range(8):
        e("  v_lshlrev_b32 v86, 16, v%d" % (10 + r))
        e("  v_and_b32 v87, s7, v%d" % (10 + r))
        e("  v_pk_mul_f32 v[86:87], v[86:87], v[54:55]")
        round_pair(86, 86, 82)
        e("  v_add_f32 v%d, v86, v87" % (96 + r))
    e("  s_nop 1")
    for sh in (1, 2, 4, 8):
        for r in range(8):
            e("  v_add_f32_dpp v%d, v%d, v%d row_shr:%d row_mask:0xf bank_mask:0xf bound_ctrl:0" % (96 + r, 96 + r, 96 + r, sh))
    for r in range(8):
        e("  v_add_f32_dpp v%d, v%d, v%d row_bcast:15 row_mask:0xa bank_mask:0xf" % (96 + r, 96 + r, 96 + r))
    for r in range(8):
        e("  v_add_f32_dpp v%d, v%d, v%d row_bcast:31 row_mask:0xc bank_mask:0xf" % (96 + r, 96 + r, 96 + r))
    e("  v_lshrrev_b32 v7, 6, v0")
    e("  v_lshlrev_b32 v7, 5, v7")
    e("  s_mov_b32 exec_lo, 0")
    e("  s_mov_b32 exec_hi, 0x80000000")
    e("  ds_write_b128 v7, v[96:99]")
    e("  ds_write_b128 v7, v[100:103] offset:16")
    e("  s_mov_b64 exec, -1")
    e("  s_waitcnt lgkmcnt(0)")
    e("  s_barrier")
    e("  v_cmp_gt_u32 vcc, 8, v0")
    e("  s_and_saveexec_b64 s[14:15], vcc")
    e("  s_cbranch_execz L_prep_end")
    for w in range(4):
        e("  ds_read_b32 v%d, v1 offset:%d" % (8 + w, 32 * w))
    e("  s_lshl_b32 s5, s4, 2")
    e("  s_add_u32 s5, s5, 0x%x" % WS_G)
    e("  v_add_u32 v2, s5, v1")
    e("  s_waitcnt lgkmcnt(0)")
    e("  v_add_f32 v8, v8, v9")
    e("  v_add_f32 v10, v10, v11")
    e("  v_add_f32 v8, v8, v10")
    e("  v_cvt_pk_bf16_f32 v8, v8, v8")
    e("  v_lshlrev_b32 v8, 16, v8")
    e("  v_mul_f32 v8, 0x%08x, v8" % f2u(-1.4426950408889634))
    e("  v_exp_f32 v8, v8")
    e("  s_nop 0")
    e("  v_add_f32 v8, 1.0, v8")
    e("  v_rcp_f32 v8, v8")
    e("  s_nop 0")
    e("  v_cvt_pk_bf16_f32 v8, v8, v8")
    e("  v_lshlrev_b32 v8, 16, v8")
    e("  v_sub_f32 v9, 1.0, v8")
    e("  v_cvt_pk_bf16_f32 v8, v8, v9")
    e("  global_store_dword v2, v8, s[28:29]")
    e("L_prep_end:")
    e("  s_endpgm")

CPY = 4640
RW = 9216
YB = 4 * RW
LDS2 = YB + 4 * 4096

def gen_conv():
    e(".globl conv_kernel")
    e(".p2align 8")
    e(".type conv_kernel,@function")
    e("conv_kernel:")
    e("  s_cmp_ge_u32 s2, 256")
    e("  s_cbranch_scc1 L_conv_end")
    e("  s_load_dwordx2 s[16:17], s[0:1], 64")
    e("  s_load_dwordx4 s[20:23], s[0:1], 104")
    e("  s_load_dwordx2 s[24:25], s[0:1], 128")
    e("  s_load_dwordx2 s[26:27], s[0:1], 144")
    e("  v_lshrrev_b32 v4, 6, v0")
    e("  v_and_b32 v1, 63, v0")
    e("  v_readfirstlane_b32 s3, v4")
    e("  v_and_b32 v2, 15, v1")
    e("  v_lshrrev_b32 v3, 4, v1")
    e("  s_and_b32 s4, s2, 7")
    e("  s_lshr_b32 s5, s2, 3")
    e("  s_lshl_b32 s4, s4, 6")
    e("  s_lshl_b32 s5, s5, 1")
    e("  s_add_u32 s4, s4, s5")
    e("  s_lshr_b32 s5, s3, 1")
    e("  s_add_u32 s5, s5, s4")
    e("  s_and_b32 s6, s3, 1")
    e("  s_lshl_b32 s28, s5, 12")
    e("  s_lshl_b32 s29, s6, 21")
    e("  s_add_u32 s29, s29, s28")
    e("  s_mov_b32 s7, 0xffff0000")
    e("  s_waitcnt lgkmcnt(0)")
    e("  s_add_u32 s8, s26, s29")
    e("  s_addc_u32 s9, s27, 0")
    e("  s_and_b32 s9, s9, 0xffff")
    e("  s_mov_b32 s10, 4096")
    e("  s_mov_b32 s11, 0x00020000")
    e("  s_add_u32 s30, s26, 0x%x" % WS_KA)
    e("  s_addc_u32 s31, s27, 0")
    e("  s_cmp_eq_u32 s6, 0")
    e("  s_cselect_b32 s30, s30, s20")
    e("  s_cselect_b32 s31, s31, s21")
    e("  s_add_u32 s12, s30, s28")
    e("  s_addc_u32 s13, s31, 0")
    e("  s_and_b32 s13, s13, 0xffff")
    e("  s_mov_b32 s14, 4096")
    e("  s_mov_b32 s15, 0x00020000")
    e("  v_lshlrev_b32 v5, 4, v1")
    for k in range(4):
        e("  buffer_load_dwordx4 %s, v5, s[8:11], 0 offen offset:%d" % (quad(8 + 4 * k), 1024 * k))
    e("  v_add_u32 v6, 16, v5")
    for k in range(4):
        e("  buffer_load_dword v%d, v6, s[8:11], 0 offen offset:%d" % (24 + k, 1024 * k))
    for k in range(4):
        e("  buffer_load_dwordx4 %s, v5, s[12:15], 0 offen offset:%d" % (quad(96 + 4 * k), 1024 * k))
    e("  v_lshlrev_b32 v7, 5, v0")
    e("  v_add_u32 v7, 0x%x, v7" % WS_G)
    e("  global_load_dwordx4 v[192:195], v7, s[26:27]")
    e("  global_load_dwordx4 v[196:199], v7, s[26:27] offset:16")
    e("  s_lshl_b32 s5, s4, 1")
    e("  v_mov_b32 v7, s5")
    e("  global_load_dword v200, v7, s[16:17]")
    e("  global_load_dword v201, v7, s[22:23]")
    e("  v_lshlrev_b32 v202, 2, v2")
    e("  v_lshl_add_u32 v202, v3, 4, v202")
    for m in range(4):
        e("  v_add_u32 v%d, %d, v202" % (204 + m, (-60 + 4 * m) & 0xFFFFFFFF))
    e("  v_add_u32 v202, 4, v202")
    e("  s_mul_i32 s5, s3, %d" % RW)
    e("  v_and_b32 v28, 1, v2")
    e("  v_lshrrev_b32 v29, 1, v2")
    e("  v_sub_u32 v28, 1, v28")
    e("  v_mul_u32_u24 v28, %d, v28" % CPY)
    e("  v_lshlrev_b32 v29, 6, v29")
    e("  v_sub_u32 v28, v28, v29")
    e("  v_lshl_add_u32 v28, v3, 4, v28")
    e("  v_add_u32 v28, 448, v28")
    e("  v_add_u32 v203, s5, v28")
    e("  v_add_u32 v7, s5, v5")
    for r in range(4):
        e("  v_mov_b32 v%d, 0" % (28 + r))
    e("  v_cmp_gt_u32 vcc, 28, v1")
    e("  s_and_saveexec_b64 s[18:19], vcc")
    e("  ds_write_b128 v7, v[28:31] offset:4096")
    e("  ds_write_b128 v7, v[28:31] offset:%d" % (4096 + CPY))
    e("  s_mov_b64 exec, s[18:19]")
    for r in range(160, 192):
        e("  v_mov_b32 v%d, 0" % r)
    e("  s_waitcnt vmcnt(8)")
    for k in range(4):
        b = 8 + 4 * k
        e("  ds_write_b128 v7, %s offset:%d" % (quad(b), 1024 * k))
        e("  v_alignbit_b32 v28, v%d, v%d, 16" % (b + 1, b))
        e("  v_alignbit_b32 v29, v%d, v%d, 16" % (b + 2, b + 1))
        e("  v_alignbit_b32 v30, v%d, v%d, 16" % (b + 3, b + 2))
        e("  v_alignbit_b32 v31, v%d, v%d, 16" % (24 + k, b + 3))
        e("  ds_write_b128 v7, v[28:31] offset:%d" % (1024 * k + CPY))
        e("  s_nop 1")
    e("  s_waitcnt vmcnt(4)")
    def kreg(st, sp):
        return 32 + 64 * st + 4 * sp
    def ureg(st, bp):
        return 32 + 64 * st + 32 + 4 * bp
    def loads(rc):
        st = rc & 1
        ins = []
        for sp in range(8):
            s = 8 * sp + rc
            if s == 0:
                for m in range(4):
                    ins.append("  buffer_load_dword v%d, v%d, s[12:15], 0 offen" % (kreg(st, sp) + m, 204 + m))
            else:
                ins.append("  buffer_load_dwordx4 %s, v202, s[12:15], 0 offen offset:%d" % (quad(kreg(st, sp)), 64 * (s - 1)))
        insu = []
        for bp in range(8):
            beta = 8 * bp - rc
            insu.append("  ds_read_b128 %s, v203 offset:%d" % (quad(ureg(st, bp)), 3584 - 64 * beta))
        return ins, insu
    kl, ul = loads(0)
    for x in kl:
        e(x)
    e("  s_waitcnt lgkmcnt(0)")
    for x in ul:
        e(x)
    for rc in range(8):
        st = rc & 1
        e("  s_waitcnt vmcnt(0) lgkmcnt(0)")
        mf = []
        for sp in range(8):
            for bp in range(8 - sp):
                t = sp + bp
                mf.append("  v_mfma_f32_16x16x32_bf16 %s, %s, %s, %s" % (quad(160 + 4 * t), quad(ureg(st, bp)), quad(kreg(st, sp)), quad(160 + 4 * t)))
        nl = []
        if rc < 7:
            kl, ul = loads(rc + 1)
            for a, b in zip(kl, ul):
                nl += [a, b]
        li = 0
        for i, x in enumerate(mf):
            e(x)
            if li < len(nl):
                e(nl[li]); li += 1
        assert li == len(nl)
    e("  s_nop 15")
    e("  s_lshl_b32 s5, s3, 12")
    e("  s_add_u32 s5, s5, %d" % YB)
    e("  v_lshlrev_b32 v5, 7, v3")
    e("  v_lshl_add_u32 v5, v2, 2, v5")
    e("  v_add_u32 v5, s5, v5")
    for t in range(8):
        a = 160 + 4 * t
        e("  v_cvt_pk_bf16_f32 v%d, v%d, v%d" % (8 + 2 * t, a, a + 1))
        e("  v_cvt_pk_bf16_f32 v%d, v%d, v%d" % (9 + 2 * t, a + 2, a + 3))
        e("  ds_write_b32 v5, v%d offset:%d" % (8 + 2 * t, 512 * t))
        e("  ds_write_b32 v5, v%d offset:%d" % (9 + 2 * t, 512 * t + 64))
    e("  s_waitcnt lgkmcnt(0)")
    e("  s_barrier")
    e("  v_lshlrev_b32 v5, 4, v0")
    e("  v_sub_u32 v6, 4080, v5")
    for w in range(4):
        e("  ds_read_b128 %s, v5 offset:%d" % (quad(32 + 4 * w), YB + 4096 * w))
    for w in range(4):
        e("  ds_read_b128 %s, v6 offset:%d" % (quad(48 + 4 * w), RW * w))
    e("  v_lshlrev_b32 v64, 16, v200")
    e("  v_and_b32 v65, s7, v200")
    e("  v_lshlrev_b32 v66, 16, v201")
    e("  v_and_b32 v67, s7, v201")
    e("  s_lshl_b32 s5, s4, 1")
    e("  v_lshlrev_b32 v7, 13, v0")
    e("  v_add_u32 v7, s5, v7")
    e("  v_add_u32 v8, 4096, v7")
    e("  s_waitcnt lgkmcnt(0)")
    def unp(dst, src, hi):
        if hi:
            e("  v_and_b32 v%d, s7, v%d" % (dst, src))
        else:
            e("  v_lshlrev_b32 v%d, 16, v%d" % (dst, src))
    for k in range(8):
        B = 70 + 20 * (k & 1)
        YA, YBp, U, KV, GP, T1, T2, tmp = B, B + 2, B + 4, B + 6, B + 8, B + 10, B + 12, B + 14
        unp(YA, 32 + (k >> 1), k & 1)
        unp(YA + 1, 40 + (k >> 1), k & 1)
        unp(YBp, 36 + (k >> 1), k & 1)
        unp(YBp + 1, 44 + (k >> 1), k & 1)
        ee = 7 - k
        unp(U, 48 + (ee >> 1), ee & 1)
        unp(U + 1, 56 + (ee >> 1), ee & 1)
        unp(KV, 52 + (ee >> 1), ee & 1)
        unp(KV + 1, 60 + (ee >> 1), ee & 1)
        unp(GP, 192 + k, 0)
        unp(GP + 1, 192 + k, 1)
        e("  v_pk_mul_f32 %s, %s, v[64:65]" % (pair(T1), pair(U)))
        e("  v_pk_mul_f32 %s, %s, v[66:67]" % (pair(T2), pair(KV)))
        round_pair(T1, T1, tmp)
        round_pair(T2, T2, tmp + 1)
        e("  v_pk_add_f32 %s, %s, %s" % (pair(T1), pair(YA), pair(T1)))
        e("  v_pk_add_f32 %s, %s, %s" % (pair(T2), pair(YBp), pair(T2)))
        round_pair(T1, T1, tmp)
        round_pair(T2, T2, tmp + 1)
        e("  v_pk_mul_f32 %s, %s, %s" % (pair(T2), pair(U), pair(T2)))
        e("  v_pk_mul_f32 %s, %s, %s op_sel:[0,0] op_sel_hi:[1,0]" % (pair(T1), pair(T1), pair(GP)))
        round_pair(T2, T2, tmp + 1)
        round_pair(T1, T1, tmp)
        e("  v_pk_mul_f32 %s, %s, %s op_sel:[0,1] op_sel_hi:[1,1]" % (pair(T2), pair(T2), pair(GP)))
        round_pair(T2, T2, tmp + 1)
        e("  v_pk_add_f32 %s, %s, %s" % (pair(T1), pair(T1), pair(T2)))
        e("  v_cvt_pk_bf16_f32 v%d, v%d, v%d" % (120 + k, T1, T1 + 1))
        e("  global_store_dword v%d, v%d, s[24:25] offset:%d" % (7 + (k >> 2), 120 + k, 1024 * (k & 3)))
    e("L_conv_end:")
    e("  s_endpgm")

def descriptor(name, vgpr, sgpr=48):
    e(".amdhsa_kernel %s" % name)
    e("  .amdhsa_next_free_vgpr %d" % vgpr)
    e("  .amdhsa_next_free_sgpr %d" % sgpr)
    e("  .amdhsa_accum_offset %d" % ((vgpr + 3) // 4 * 4))
    e("  .amdhsa_group_segment_fixed_size 0")
    e("  .amdhsa_kernarg_size 152")
    e("  .amdhsa_user_sgpr_count 2")
    e("  .amdhsa_user_sgpr_kernarg_segment_ptr 1")
    e("  .amdhsa_system_sgpr_workgroup_id_x 1")
    e(".end_amdhsa_kernel")

def main():
    e(HEADER.rstrip("\n"))
    e("; @launch kernel=prep_kernel grid=(768,1,1) block=(256,1,1) lds=13824")
    e("; @launch kernel=conv_kernel grid=(256,1,1) block=(256,1,1) lds=%d" % LDS2)
    e('.amdgcn_target "amdgcn-amd-amdhsa--gfx950"')
    e(".text")
    gen_prep()
    gen_conv()
    e('.section .rodata,"a"')
    e(".p2align 6")
    descriptor("prep_kernel", 128)
    e(".p2align 6")
    descriptor("conv_kernel", 208)
    open(sys.argv[1] if len(sys.argv) > 1 else OUT, "w").write("\n".join(L) + "\n")

main()
```

```python
import struct, sys, math

NAME = "gated_mix__ssm_conv_s4__ssm_conv_h3__prompt"
OUT = "cdna_kernels/%s.s" % NAME
KN = NAME + "_kernel"

def f2u(x):
    return struct.unpack("<I", struct.pack("<f", x))[0]

L = []
def e(s=""):
    L.append(s)

STAMP = "--stamp" in sys.argv
WS_UT, WS_KVT, WS_G, WS_ST, WS_MB = 0x000000, 0x200000, 0x600000, 0x800000, 0x700000

def stamp(i):
    if STAMP:
        e("  s_memrealtime s[%d:%d]" % (60 + 2 * i, 61 + 2 * i))
        e("  s_memtime s[%d:%d]" % (80 + 2 * i, 81 + 2 * i))
def stamp_flush(n):
    if not STAMP:
        return
    e("  s_waitcnt vmcnt(0) lgkmcnt(0)")
    e("  s_mov_b64 exec, 1")
    e("  v_lshrrev_b32 v124, 6, v0")
    e("  v_lshlrev_b32 v124, 8, v124")
    e("  s_lshl_b32 s100, s2, 11")
    e("  s_add_u32 s100, s100, 0x%x" % WS_ST)
    e("  v_add_u32 v124, s100, v124")
    for i in range(n):
        e("  v_mov_b32 v126, s%d" % (60 + 2 * i))
        e("  v_mov_b32 v127, s%d" % (61 + 2 * i))
        e("  global_store_dwordx2 v124, v[126:127], s[52:53] offset:%d" % (8 * i))
        e("  s_nop 1")
        e("  v_mov_b32 v126, s%d" % (80 + 2 * i))
        e("  v_mov_b32 v127, s%d" % (81 + 2 * i))
        e("  global_store_dwordx2 v124, v[126:127], s[52:53] offset:%d" % (128 + 8 * i))
        e("  s_nop 1")

HEADER = open("cdna_kernels/%s.s.ref" % NAME).read().split("; Override launch")[0]

def pair(r):
    return "v[%d:%d]" % (r, r + 1)
def quad(r):
    return "v[%d:%d]" % (r, r + 3)

def round_pair(dst, src, tmp, M="s7"):
    e("  v_cvt_pk_bf16_f32 v%d, v%d, v%d" % (tmp, src, src + 1))
    e("  v_lshlrev_b32 v%d, 16, v%d" % (dst, tmp))
    e("  v_and_b32 v%d, %s, v%d" % (dst + 1, M, tmp))

def unp(dst, src, hi):
    if hi:
        e("  v_and_b32 v%d, s7, v%d" % (dst, src))
    else:
        e("  v_lshlrev_b32 v%d, 16, v%d" % (dst, src))

CPY = 4640
RW = 9216
KRW = 4224
L_TAB = 0
L_CNT = 12288
L_PT = 12416
L_G = L_PT + 4096
L_Y = L_G + 8192
L_U = L_Y + 4 * 4096
L_K = L_U + 4 * RW
LDS_TOTAL = L_K + 4 * KRW
L_TT = L_G
TTW = 5120

SPIN_MAX = 1 << 18

def poll(label, off_reg, v0_reg, data=(9, 14, 15, 16)):
    e("  s_mov_b32 s58, 0")
    e("  s_mov_b64 exec, 1")
    for d in data[:3]:
        e("  global_load_dword v%d, v%d, s[52:53] sc1" % (d, off_reg))
        e("  s_sleep 1")
    e("%s:" % label)
    for i in range(4):
        e("  global_load_dword v%d, v%d, s[52:53] sc1" % (data[(i + 3) % 4], off_reg))
        e("  s_waitcnt vmcnt(3)")
        e("  v_cmp_eq_u32 vcc, v%d, v%d" % (v0_reg, data[i]))
        e("  s_add_u32 s58, s58, 1")
        e("  s_nop 0")
        e("  s_cbranch_vccz %s_done" % label)
        e("  s_sleep 1")
    e("  s_cmp_lt_u32 s58, %d" % SPIN_MAX)
    e("  s_cbranch_scc1 %s" % label)
    e("%s_done:" % label)
    e("  s_waitcnt vmcnt(0)")
    e("  s_mov_b64 exec, -1")

def arrive():
    e("  v_mov_b32 v10, %d" % L_CNT)
    e("  v_mov_b32 v11, 1")
    for x in TOFF:
        e(x)
    e("  v_mov_b32 v12, s8")
    e("  s_waitcnt vmcnt(0)")
    stamp(3)
    e("  s_mov_b64 exec, 1")
    e("  ds_add_rtn_u32 v13, v10, v11")
    e("  s_waitcnt lgkmcnt(0)")
    e("  v_cmp_eq_u32 vcc, 3, v13")
    e("  s_and_b64 exec, exec, vcc")
    e("  s_cbranch_execz L_arr_done")
    e("  global_atomic_add v13, v12, v11, s[50:51] sc0 sc1")
    e("  s_waitcnt vmcnt(0)")
    e("  v_cmp_eq_u32 vcc, 31, v13")
    e("  s_and_b64 exec, exec, vcc")
    e("  s_cbranch_execz L_arr_done")
    e("  v_mov_b32 v12, 32")
    e("  global_atomic_add v13, v12, v11, s[50:51] sc0 sc1")
    e("  s_mov_b64 exec, 0xffffffff")
    e("  v_lshlrev_b32 v14, 10, v1")
    e("  s_lshl_b32 s8, s4, 7")
    e("  s_add_u32 s8, s8, 0x%x" % WS_MB)
    e("  v_add_u32 v14, s8, v14")
    e("  v_mov_b32 v11, 1")
    e("  global_atomic_add v14, v11, s[52:53] sc1")
    e("  s_mov_b64 exec, 1")
    e("  s_waitcnt vmcnt(1)")
    e("  v_cmp_eq_u32 vcc, 7, v13")
    e("  s_and_b64 exec, exec, vcc")
    e("  s_cbranch_execz L_arr_done")
    e("  s_mov_b64 exec, -1")
    e("  v_lshlrev_b32 v14, 7, v1")
    e("  v_add_u32 v14, 0x%x, v14" % (WS_MB + 4))
    e("  v_mov_b32 v11, 1")
    for c in range(4):
        e("  global_atomic_add v14, v11, s[52:53] sc1")
        if c < 3:
            e("  v_add_u32 v14, 8192, v14")
    e("L_arr_done:")
    e("  s_mov_b64 exec, -1")

TOFF = ["  s_lshr_b32 s8, s4, 1", "  s_lshl_b32 s8, s8, 6", "  s_and_b32 s9, s4, 1", "  s_lshl_b32 s9, s9, 4", "  s_add_u32 s8, s8, s9"]
GOFF = ["  s_and_b32 s8, s2, 3", "  s_lshl_b32 s8, s8, 6", "  s_add_u32 s8, s8, 32"]

def gate(R0, R1, GW, rowreg):
    for rr, R in enumerate((R0, R1)):
        for dd in range(4):
            e("  v_lshlrev_b32 v16, 16, v%d" % (R + dd))
            e("  v_and_b32 v17, s7, v%d" % (R + dd))
            e("  v_lshlrev_b32 v18, 16, v%d" % (GW + dd))
            e("  v_and_b32 v19, s7, v%d" % (GW + dd))
            e("  v_pk_mul_f32 v[16:17], v[16:17], v[18:19]")
            round_pair(16, 16, 20)
            if dd == 0:
                e("  v_add_f32 v%d, v16, v17" % (22 + rr))
            else:
                e("  v_add_f32 v16, v16, v17")
                e("  v_add_f32 v%d, v%d, v16" % (22 + rr, 22 + rr))
    e("  s_nop 1")
    for sh in (1, 2, 4, 8):
        for rr in range(2):
            e("  v_add_f32_dpp v%d, v%d, v%d row_shr:%d row_mask:0xf bank_mask:0xf bound_ctrl:0" % (22 + rr, 22 + rr, 22 + rr, sh))
        e("  s_nop 0")
    for rr in range(2):
        e("  v_add_f32_dpp v%d, v%d, v%d row_bcast:15 row_mask:0xa bank_mask:0xf" % (22 + rr, 22 + rr, 22 + rr))
    e("  s_nop 0")
    for rr in range(2):
        e("  v_add_f32_dpp v%d, v%d, v%d row_bcast:31 row_mask:0xc bank_mask:0xf" % (22 + rr, 22 + rr, 22 + rr))
    for rr in range(2):
        r = 22 + rr
        e("  v_cvt_pk_bf16_f32 v%d, v%d, v%d" % (r, r, r))
        e("  v_lshlrev_b32 v%d, 16, v%d" % (r, r))
        e("  v_mul_f32 v%d, 0x%08x, v%d" % (r, f2u(-1.4426950408889634), r))
        e("  v_exp_f32 v%d, v%d" % (r, r))
        e("  s_nop 0")
        e("  v_add_f32 v%d, 1.0, v%d" % (r, r))
        e("  v_rcp_f32 v%d, v%d" % (r, r))
        e("  s_nop 0")
        e("  v_cvt_pk_bf16_f32 v%d, v%d, v%d" % (r, r, r))
        e("  v_lshlrev_b32 v%d, 16, v%d" % (r, r))
        e("  v_sub_f32 v21, 1.0, v%d" % r)
        e("  v_cvt_pk_bf16_f32 v%d, v%d, v21" % (R0 + rr, r))
    e("  s_lshl_b32 s8, %s, 2" % rowreg)
    e("  s_add_u32 s8, s8, 0x%x" % WS_G)
    e("  v_mov_b32 v21, s8")
    e("  s_mov_b32 exec_lo, 0")
    e("  s_mov_b32 exec_hi, 0x80000000")
    e("  global_store_dwordx2 v21, %s, s[52:53] sc1" % pair(R0))
    e("  s_mov_b64 exec, -1")

def gen():
    e(".globl %s" % KN)
    e(".p2align 8")
    e(".type %s,@function" % KN)
    e("%s:" % KN)
    e("  s_cmp_ge_u32 s2, 256")
    e("  s_cbranch_scc1 L_end")
    stamp(0)
    e("  s_load_dwordx16 s[16:31], s[0:1], 0")
    e("  s_load_dwordx16 s[32:47], s[0:1], 64")
    e("  s_load_dwordx4 s[48:51], s[0:1], 128")
    e("  s_load_dwordx2 s[52:53], s[0:1], 144")
    e("  v_lshrrev_b32 v4, 6, v0")
    e("  v_and_b32 v1, 63, v0")
    e("  v_readfirstlane_b32 s3, v4")
    e("  v_and_b32 v2, 15, v1")
    e("  v_lshrrev_b32 v3, 4, v1")
    e("  s_mov_b32 s7, 0xffff0000")
    e("  s_and_b32 s4, s2, 7")
    e("  s_lshr_b32 s5, s2, 3")
    e("  s_lshl_b32 s6, s4, 6")
    e("  s_lshl_b32 s8, s5, 1")
    e("  s_add_u32 s6, s6, s8")
    e("  s_cmp_ge_u32 s3, 4")
    e("  s_cbranch_scc1 L_K")

    e("  s_setprio 2")
    e("  s_lshr_b32 s8, s3, 1")
    e("  s_and_b32 s9, s3, 1")
    e("  s_lshl_b32 s10, s5, 6")
    e("  s_lshl_b32 s8, s8, 5")
    e("  s_add_u32 s10, s10, s8")
    e("  s_lshl_b32 s11, s4, 6")
    e("  s_lshl_b32 s9, s9, 5")
    e("  s_add_u32 s11, s11, s9")
    e("  s_lshl_b32 s12, s10, 10")
    e("  s_lshl_b32 s13, s11, 1")
    e("  s_add_u32 s12, s12, s13")
    e("  v_lshlrev_b32 v5, 13, v3")
    e("  v_lshl_add_u32 v5, v2, 2, v5")
    e("  v_add_u32 v5, s12, v5")
    e("  v_add_u32 v6, 4096, v5")
    e("  v_subrev_u32 v7, 3072, v5")
    e("  s_lshl_b32 s13, s11, 3")
    e("  v_lshlrev_b32 v8, 4, v2")
    e("  v_add_u32 v8, s13, v8")
    e("  s_waitcnt lgkmcnt(0)")
    e("  s_mov_b32 s12, s36")
    e("  s_and_b32 s13, s37, 0xffff")
    e("  s_mov_b32 s14, 0x200000")
    e("  s_mov_b32 s15, 0x00020000")
    e("  s_barrier")
    e("  s_lshl_b32 s8, s2, 7")
    e("  s_add_u32 s8, s8, 0x%x" % WS_MB)
    e("  v_mov_b32 v198, s8")
    e("  global_load_dwordx2 v[196:197], v198, s[52:53] sc1")
    e("  global_load_dwordx4 v[40:43], v8, s[40:41]")
    for h in range(3):
        e("  buffer_load_dword v%d, v7, s[12:15], 0 offen offset:%d" % (26 + h, 1024 * h))
    for r in range(8):
        e("  buffer_load_dword v%d, v%d, s[12:15], 0 offen offset:%d" % (29 + r, 5 + (r >> 2), 1024 * (r & 3)))
    for r in range(8):
        e("  global_load_dword v%d, v%d, s[38:39] offset:%d" % (18 + r, 5 + (r >> 2), 1024 * (r & 3)))
    for r in range(8):
        e("  global_load_dword v%d, v%d, s[16:17] offset:%d" % (10 + r, 5 + (r >> 2), 1024 * (r & 3)))
    e("  s_lshl_b32 s8, s2, 3")
    e("  s_lshl_b32 s9, s3, 1")
    e("  s_add_u32 s59, s8, s9")
    e("  s_lshl_b32 s8, s59, 10")
    e("  v_lshlrev_b32 v44, 4, v1")
    e("  v_add_u32 v45, s8, v44")
    e("  global_load_dwordx4 v[184:187], v45, s[16:17]")
    e("  global_load_dwordx4 v[188:191], v45, s[16:17] offset:1024")
    e("  global_load_dwordx4 v[192:195], v44, s[46:47]")
    e("  s_mov_b32 s54, 0x05040100")
    e("  s_mov_b32 s55, 0x07060302")
    e("  s_mul_i32 s8, s3, %d" % TTW)
    e("  s_add_u32 s8, s8, %d" % L_TT)
    e("  v_mul_u32_u24 v44, 160, v2")
    e("  v_lshlrev_b32 v45, 4, v3")
    e("  v_sub_u32 v44, v44, v45")
    e("  v_add_u32 v44, 48, v44")
    e("  v_add_u32 v44, s8, v44")
    e("  v_lshrrev_b32 v45, 2, v1")
    e("  v_and_b32 v46, 3, v1")
    e("  v_mul_u32_u24 v47, 80, v45")
    e("  v_lshl_add_u32 v47, v46, 4, v47")
    e("  v_add_u32 v9, s8, v47")
    e("  s_lshl_b32 s8, s11, 12")
    e("  s_sub_u32 s9, 2016, s10")
    e("  s_lshl_b32 s9, s9, 1")
    e("  s_add_u32 s8, s8, s9")
    e("  v_lshlrev_b32 v45, 12, v45")
    e("  v_lshl_add_u32 v45, v46, 4, v45")
    e("  v_add_u32 v8, s8, v45")
    e("  v_add_u32 v7, 0x10000, v8")
    e("  v_mov_b32 v45, v44")
    e("  s_add_u32 s56, s52, 0x%x" % WS_KVT)
    e("  s_addc_u32 s57, s53, 0")
    e("  s_waitcnt vmcnt(30)")
    e("  v_lshlrev_b32 v46, 16, v40")
    e("  v_lshlrev_b32 v47, 16, v42")
    e("  v_and_b32 v48, s7, v40")
    e("  v_and_b32 v49, s7, v42")
    e("  v_lshlrev_b32 v50, 16, v41")
    e("  v_lshlrev_b32 v51, 16, v43")
    e("  v_and_b32 v52, s7, v41")
    e("  v_and_b32 v53, s7, v43")
    e("  s_waitcnt vmcnt(19)")
    stamp(1)
    for h in range(11):
        e("  v_lshlrev_b32 v%d, 16, v%d" % (56 + 2 * h, 26 + h))
        e("  v_and_b32 v%d, s7, v%d" % (57 + 2 * h, 26 + h))
    W = [46, 48, 50, 52]
    for r in range(8):
        S = 104 + 2 * r
        e("  v_pk_mul_f32 v[78:79], %s, %s" % (pair(56 + 2 * r), pair(W[3])))
        round_pair(S, 78, 82)
        for t in range(1, 4):
            e("  v_pk_mul_f32 v[80:81], %s, %s" % (pair(56 + 2 * (r + t)), pair(W[3 - t])))
            round_pair(80, 80, 83)
            e("  v_pk_add_f32 %s, %s, v[80:81]" % (pair(S), pair(S)))
            round_pair(S, S, 82)
    e("  s_waitcnt vmcnt(11)")
    for r in range(8):
        S = 104 + 2 * r
        e("  v_lshlrev_b32 v84, 16, v%d" % (18 + r))
        e("  v_and_b32 v85, s7, v%d" % (18 + r))
        e("  v_pk_mul_f32 v[84:85], %s, v[84:85]" % pair(S))
        e("  v_cvt_pk_bf16_f32 v%d, v84, v85" % (88 + r))
    for m in range(4):
        e("  v_perm_b32 v%d, v%d, v%d, s54" % (56 + m, 88 + 6 - 2 * m, 88 + 7 - 2 * m))
        e("  v_perm_b32 v%d, v%d, v%d, s55" % (60 + m, 88 + 6 - 2 * m, 88 + 7 - 2 * m))
    e("  ds_write_b128 v45, v[56:59] offset:2560")
    e("  ds_write_b128 v45, v[60:63] offset:2640")
    e("  s_waitcnt vmcnt(3)")
    for m in range(4):
        e("  v_perm_b32 v%d, v%d, v%d, s54" % (64 + m, 10 + 6 - 2 * m, 10 + 7 - 2 * m))
        e("  v_perm_b32 v%d, v%d, v%d, s55" % (68 + m, 10 + 6 - 2 * m, 10 + 7 - 2 * m))
    e("  ds_write_b128 v45, v[64:67]")
    e("  ds_write_b128 v45, v[68:71] offset:80")
    e("  ds_read_b128 v[72:75], v9 offset:2560")
    e("  ds_read_b128 v[76:79], v9 offset:3840")
    e("  ds_read_b128 v[80:83], v9")
    e("  ds_read_b128 v[84:87], v9 offset:1280")
    e("  s_waitcnt lgkmcnt(3)")
    e("  global_store_dwordx4 v8, v[72:75], s[56:57] sc1")
    e("  s_waitcnt lgkmcnt(2)")
    e("  global_store_dwordx4 v7, v[76:79], s[56:57] sc1")
    e("  s_waitcnt lgkmcnt(1)")
    e("  global_store_dwordx4 v8, v[80:83], s[52:53] sc1")
    e("  s_waitcnt lgkmcnt(0)")
    e("  global_store_dwordx4 v7, v[84:87], s[52:53] sc1")
    stamp(2)
    e("  s_waitcnt vmcnt(4)")
    gate(184, 188, 192, "s59")
    e("  v_mov_b32 v10, %d" % (L_CNT + 8))
    e("  ds_write_b32 v10, v197")
    e("  s_lshr_b32 s8, s3, 1")
    e("  s_add_u32 s8, s8, s6")
    e("  s_and_b32 s9, s3, 1")
    e("  s_lshl_b32 s8, s8, 12")
    e("  s_lshl_b32 s9, s9, 21")
    e("  s_add_u32 s9, s9, s8")
    e("  s_add_u32 s12, s52, s9")
    e("  s_addc_u32 s13, s53, 0")
    e("  s_and_b32 s13, s13, 0xffff")
    e("  s_mov_b32 s14, 4096")
    e("  s_mov_b32 s15, 0x00020000")
    e("  s_mul_i32 s8, s3, %d" % KRW)
    e("  s_add_u32 s8, s8, %d" % (L_K + 4))
    e("  v_lshlrev_b32 v204, 2, v2")
    e("  v_lshl_add_u32 v204, v3, 4, v204")
    e("  v_add_u32 v204, s8, v204")
    for sp in range(1, 8):
        e("  v_add_u32 v%d, %d, v204" % (204 + sp, 512 * sp))
    e("  s_mul_i32 s8, s3, %d" % RW)
    e("  v_and_b32 v28, 1, v2")
    e("  v_lshrrev_b32 v29, 1, v2")
    e("  v_sub_u32 v28, 1, v28")
    e("  v_mul_u32_u24 v28, %d, v28" % CPY)
    e("  v_lshlrev_b32 v29, 6, v29")
    e("  v_sub_u32 v28, v28, v29")
    e("  v_lshl_add_u32 v28, v3, 4, v28")
    e("  v_add_u32 v28, %d, v28" % (L_U + 448))
    e("  v_add_u32 v203, s8, v28")
    e("  v_lshlrev_b32 v5, 4, v1")
    e("  v_add_u32 v6, 16, v5")
    e("  s_add_u32 s8, s8, %d" % L_U)
    e("  v_add_u32 v202, s8, v5")
    for r in range(4):
        e("  v_mov_b32 v%d, 0" % (28 + r))
    e("  v_cmp_gt_u32 vcc, 28, v1")
    e("  s_and_saveexec_b64 s[18:19], vcc")
    e("  ds_write_b128 v202, v[28:31] offset:%d" % (4096))
    e("  ds_write_b128 v202, v[28:31] offset:%d" % (4096 + CPY))
    e("  s_mov_b64 exec, s[18:19]")
    for r in range(160, 192):
        e("  v_mov_b32 v%d, 0" % r)
    arrive()
    e("  s_setprio 0")
    e("  s_barrier")
    e("  s_cmp_lg_u32 s3, 0")
    e("  s_cbranch_scc1 L_nopoll")
    poll("L_pollT", 198, 196)
    e("L_nopoll:")
    e("  s_barrier")
    stamp(4)
    for k in range(4):
        e("  buffer_load_dwordx4 %s, v5, s[12:15], 0 offen offset:%d sc1" % (quad(8 + 4 * k), 1024 * k))
    for k in range(4):
        e("  buffer_load_dword v%d, v6, s[12:15], 0 offen offset:%d sc1" % (24 + k, 1024 * k))
    def kreg(st, sp):
        return 32 + 64 * st + 4 * sp
    def ureg(st, bp):
        return 32 + 64 * st + 32 + 4 * bp
    def kloads(rc):
        st = rc & 1
        ins = []
        for sp in range(8):
            ins.append("  ds_read2_b32 %s, v%d offset0:%d offset1:%d" % (pair(kreg(st, sp)), 204 + sp, 16 * rc, 16 * rc + 1))
            ins.append("  ds_read2_b32 %s, v%d offset0:%d offset1:%d" % (pair(kreg(st, sp) + 2), 204 + sp, 16 * rc + 2, 16 * rc + 3))
        return ins
    def uloads(rc):
        st = rc & 1
        ins = []
        for bp in range(8):
            beta = 8 * bp - rc
            ins.append("  ds_read_b128 %s, v203 offset:%d" % (quad(ureg(st, bp)), 3584 - 64 * beta))
        return ins
    for x in kloads(0):
        e(x)
    for k in range(4):
        b = 8 + 4 * k
        e("  s_waitcnt vmcnt(%d)" % (3 - k))
        e("  ds_write_b128 v202, %s offset:%d" % (quad(b), 1024 * k))
        e("  v_alignbit_b32 v28, v%d, v%d, 16" % (b + 1, b))
        e("  v_alignbit_b32 v29, v%d, v%d, 16" % (b + 2, b + 1))
        e("  v_alignbit_b32 v30, v%d, v%d, 16" % (b + 3, b + 2))
        e("  v_alignbit_b32 v31, v%d, v%d, 16" % (24 + k, b + 3))
        e("  ds_write_b128 v202, v[28:31] offset:%d" % (1024 * k + CPY))
        e("  s_nop 1")
    stamp(5)
    for x in uloads(0):
        e(x)
    for rc in range(8):
        st = rc & 1
        e("  s_waitcnt lgkmcnt(0)")
        mf = []
        for sp in range(8):
            for bp in range(8 - sp):
                t = sp + bp
                mf.append("  v_mfma_f32_16x16x32_bf16 %s, %s, %s, %s" % (quad(160 + 4 * t), quad(ureg(st, bp)), quad(kreg(st, sp)), quad(160 + 4 * t)))
        nl = []
        if rc < 7:
            kl, ul = kloads(rc + 1), uloads(rc + 1)
            for i in range(8):
                nl += [kl[2 * i], kl[2 * i + 1], ul[i]]
        li = 0
        for i, x in enumerate(mf):
            e(x)
            if li < len(nl):
                e(nl[li]); li += 1
        assert li == len(nl)
    e("  s_nop 15")
    stamp(6)
    e("  s_lshl_b32 s8, s3, 12")
    e("  s_add_u32 s8, s8, %d" % L_Y)
    e("  v_lshlrev_b32 v5, 7, v3")
    e("  v_lshl_add_u32 v5, v2, 2, v5")
    e("  v_add_u32 v5, s8, v5")
    for t in range(8):
        a = 160 + 4 * t
        e("  v_cvt_pk_bf16_f32 v%d, v%d, v%d" % (8 + 2 * t, a, a + 1))
        e("  v_cvt_pk_bf16_f32 v%d, v%d, v%d" % (9 + 2 * t, a + 2, a + 3))
        e("  ds_write_b32 v5, v%d offset:%d" % (8 + 2 * t, 512 * t))
        e("  ds_write_b32 v5, v%d offset:%d" % (9 + 2 * t, 512 * t + 64))
    e("  s_branch L_combine")

    e("L_K:")
    e("  s_setprio 1")
    e("  s_sub_u32 s8, s3, 4")
    e("  s_lshr_b32 s9, s8, 1")
    e("  s_and_b32 s10, s8, 1")
    e("  s_add_u32 s11, s9, s6")
    e("  s_lshl_b32 s12, s11, 8")
    e("  s_lshl_b32 s13, s10, 7")
    e("  s_add_u32 s12, s12, s13")
    e("  v_lshlrev_b32 v5, 1, v1")
    e("  v_add_u32 v5, s12, v5")
    e("  s_lshl_b32 s13, s11, 1")
    e("  v_mov_b32 v6, s13")
    e("  v_mov_b32 v12, 0")
    e("  v_mov_b32 v13, 0")
    e("  v_mov_b32 v14, %d" % L_CNT)
    e("  ds_write_b64 v14, v[12:13]")
    e("  s_waitcnt lgkmcnt(0)")
    e("  global_load_ushort v16, v6, s[30:31]")
    for k in range(6):
        e("  global_load_ushort v%d, v5, s[%d:%d]" % (10 + k, 18 + 2 * k, 19 + 2 * k))
    e("  s_barrier")
    e("  s_lshl_b32 s12, s11, 12")
    e("  s_lshl_b32 s13, s10, 11")
    e("  s_add_u32 s12, s12, s13")
    e("  v_lshlrev_b32 v8, 4, v1")
    e("  v_add_u32 v7, s12, v8")
    e("  global_load_dwordx4 v[176:179], v7, s[42:43]")
    e("  global_load_dwordx4 v[180:183], v7, s[42:43] offset:1024")
    e("  v_lshrrev_b32 v32, 3, v2")
    e("  v_and_b32 v33, 7, v2")
    e("  v_lshl_add_u32 v32, v32, 7, v33")
    e("  v_cvt_f32_u32 v72, v32")
    e("  v_lshrrev_b32 v32, 2, v2")
    e("  v_and_b32 v33, 3, v2")
    e("  v_lshlrev_b32 v33, 1, v33")
    e("  v_lshl_add_u32 v32, v32, 7, v33")
    e("  v_add_u32 v32, 256, v32")
    e("  v_lshrrev_b32 v34, 1, v2")
    e("  v_and_b32 v33, 1, v2")
    e("  v_lshlrev_b32 v33, 2, v33")
    e("  v_lshl_add_u32 v34, v34, 7, v33")
    e("  v_cmp_gt_u32 vcc, 8, v2")
    e("  s_nop 1")
    e("  v_cndmask_b32 v32, v34, v32, vcc")
    e("  v_cvt_f32_u32 v73, v32")
    e("  v_lshlrev_b32 v32, 7, v2")
    e("  v_add_u32 v32, 1024, v32")
    e("  v_cvt_f32_u32 v74, v32")
    e("  v_lshlrev_b32 v32, 3, v2")
    e("  v_cvt_f32_u32 v75, v32")
    e("  s_mul_i32 s12, s8, 3072")
    e("  s_add_u32 s12, s12, %d" % L_TAB)
    e("  v_mov_b32 v36, s12")
    e("  v_lshrrev_b32 v32, 1, v3")
    e("  v_and_b32 v33, 1, v3")
    e("  v_lshlrev_b32 v33, 2, v33")
    e("  v_lshl_add_u32 v32, v32, 7, v33")
    e("  v_lshl_add_u32 v32, v2, 3, v32")
    e("  v_lshl_add_u32 v112, v32, 2, v36")
    for r in range(1, 4):
        e("  v_add_u32 v%d, %d, v112" % (112 + r, 4 * r))
    e("  v_lshlrev_b32 v32, 6, v3")
    e("  v_add_u32 v32, 256, v32")
    e("  v_lshl_add_u32 v33, v2, 2, v32")
    e("  v_lshl_add_u32 v34, v2, 1, v32")
    e("  v_cmp_gt_u32 vcc, 2, v3")
    for r in range(4):
        e("  v_add_u32 v35, %d, v33" % r)
        e("  v_add_u32 v37, %d, v34" % (32 * (r >> 1) + (r & 1)))
        e("  v_cndmask_b32 v35, v37, v35, vcc")
        e("  v_lshl_add_u32 v%d, v35, 2, v36" % (116 + r))
    e("  v_lshlrev_b32 v32, 6, v3")
    e("  v_add_u32 v32, v32, v2")
    e("  v_add_u32 v32, 512, v32")
    e("  v_lshl_add_u32 v120, v32, 2, v36")
    for r in range(1, 4):
        e("  v_add_u32 v%d, %d, v120" % (120 + r, 64 * r))
    for r in range(100, 112):
        e("  v_mov_b32 v%d, 0" % r)
    e("  s_lshl_b32 s12, s8, 10")
    e("  s_add_u32 s12, s12, %d" % L_PT)
    e("  v_add_u32 v38, s12, v8")
    e("  v_lshlrev_b32 v39, 6, v3")
    e("  v_add_u32 v39, s12, v39")
    L2E = 1.4426950408889634
    L2E_HI = struct.unpack("<f", struct.pack("<I", f2u(L2E) & 0xFFFFFF00))[0]
    L2E_LO = L2E - L2E_HI
    e("  s_waitcnt vmcnt(8)")
    e("  v_lshlrev_b32 v16, 16, v16")
    e("  v_mul_f32 v32, 0x%08x, v16" % f2u(L2E_HI))
    e("  v_mul_f32 v33, 0x%08x, v16" % f2u(L2E_LO * math.log(2.0)))
    e("  v_exp_f32 v32, v32")
    e("  s_nop 0")
    e("  v_fma_f32 v32, v32, v33, v32")
    e("  v_cvt_pk_bf16_f32 v32, v32, v32")
    e("  v_lshlrev_b32 v34, 16, v32")
    e("  v_mov_b32 v35, v34")
    e("  v_mul_f32 v32, 0x%08x, v34" % f2u(L2E))
    e("  v_mul_f32 v33, 0x%08x, v34" % f2u(1.0 / (2.0 * math.pi)))
    e("  s_waitcnt vmcnt(2)")
    stamp(1)
    for k in range(6):
        e("  v_lshlrev_b32 v%d, 16, v%d" % (10 + k, 10 + k))
    e("  v_pk_mul_f32 v[40:41], v[10:11], v[32:33]")
    e("  v_pk_mul_f32 v[12:13], v[12:13], v[34:35]")
    e("  v_pk_mul_f32 v[16:17], v[14:15], v[12:13] op_sel:[0,0] op_sel_hi:[0,1]")
    e("  v_pk_fma_f32 v[42:43], v[14:15], v[12:13], v[16:17] op_sel:[1,1,0] op_sel_hi:[1,0,1] neg_lo:[1,0,0]")
    e("  v_max_f32 v18, |v42|, |v43|")
    e("  s_nop 1")
    for sh in (1, 2, 4, 8):
        e("  v_max_f32_dpp v18, v18, v18 row_shr:%d row_mask:0xf bank_mask:0xf bound_ctrl:0" % sh)
        e("  s_nop 1")
    e("  v_max_f32_dpp v18, v18, v18 row_bcast:15 row_mask:0xa bank_mask:0xf")
    e("  s_nop 1")
    e("  v_max_f32_dpp v18, v18, v18 row_bcast:31 row_mask:0xc bank_mask:0xf")
    e("  s_nop 1")
    e("  v_readlane_b32 s12, v18, 63")
    e("  s_nop 1")
    e("  v_mov_b32 v18, s12")
    e("  v_frexp_exp_i32_f32 v18, v18")
    e("  v_sub_u32 v19, 0, v18")
    e("  v_ldexp_f32 v37, 1.0, v18")
    e("  v_ldexp_f32 v42, v42, v19")
    e("  v_ldexp_f32 v43, v43, v19")
    e("  ds_write_b128 v38, v[40:43]")
    e("  ds_read_b128 v[40:43], v39")
    def step(G, mm):
        st = G * 4 + mm
        b = st & 1
        P = 40 + 4 * b
        Z, CB = P, P + 2
        A0 = 128 + 12 * (G & 1)
        B0 = 152 + 4 * (G & 1)
        e("  s_waitcnt lgkmcnt(0)")
        if st < 15:
            n = st + 1
            e("  ds_read_b128 %s, v39 offset:%d" % (quad(40 + 4 * (n & 1)), (16 * (n >> 2) + (n & 3)) * 16))
        lam = [("v[72:73]", 0), ("v[72:73]", 1), ("v[74:75]", 0), ("v[74:75]", 1)]
        for a in range(4):
            l, h = lam[a]
            e("  v_pk_mul_f32 %s, %s, %s op_sel:[0,%d] op_sel_hi:[1,%d]" % (pair(92 + 2 * a), pair(Z), l, h, h))
        for a in range(4):
            e("  v_fract_f32 v%d, v%d" % (24 + a, 93 + 2 * a))
        for a in range(4):
            e("  v_exp_f32 v%d, v%d" % (16 + 2 * a, 92 + 2 * a))
            e("  v_cos_f32 v%d, v%d" % (8 + 2 * a, 24 + a))
            e("  v_sin_f32 v%d, v%d" % (9 + 2 * a, 24 + a))
        e("  s_nop 0")
        for a in range(4):
            e("  v_pk_mul_f32 %s, %s, %s op_sel:[0,0] op_sel_hi:[1,0]" % (pair(76 + 2 * a), pair(8 + 2 * a), pair(16 + 2 * a)))
        e("  v_pk_mul_f32 v[30:31], v[82:83], %s op_sel:[0,0] op_sel_hi:[0,1]" % pair(CB))
        for a in range(3):
            e("  v_cvt_pk_f16_f32 v%d, v%d, v%d" % (A0 + 4 * a + mm, 76 + 2 * a, 77 + 2 * a))
        e("  v_pk_fma_f32 v[30:31], v[82:83], %s, v[30:31] op_sel:[1,1,0] op_sel_hi:[1,0,1] neg_lo:[1,0,0] neg_hi:[1,0,1]" % pair(CB))
        e("  v_cvt_pk_f16_f32 v%d, v30, v31" % (B0 + mm))
        if mm == 3:
            e("  s_nop 1")
            for t in range(3):
                e("  v_mfma_f32_16x16x32_f16 %s, %s, %s, %s" % (quad(100 + 4 * t), quad(A0 + 4 * t), quad(B0), quad(100 + 4 * t)))
    for G in range(4):
        for mm in range(4):
            step(G, mm)
    stamp(2)
    e("  s_lshl_b32 s12, s9, 1")
    e("  s_add_u32 s12, s12, 1")
    e("  s_mul_i32 s12, s12, %d" % KRW)
    e("  s_lshl_b32 s13, s10, 11")
    e("  s_add_u32 s12, s12, s13")
    e("  s_add_u32 s12, s12, %d" % (L_K + 64))
    e("  v_lshlrev_b32 v8, 4, v1")
    e("  v_add_u32 v7, s12, v8")
    e("  s_mul_i32 s12, s8, %d" % KRW)
    e("  s_add_u32 s12, s12, %d" % L_K)
    e("  v_add_u32 v6, s12, v8")
    for r in range(4):
        e("  v_mov_b32 v%d, 0" % (16 + r))
    e("  s_mov_b64 exec, 0xf")
    e("  ds_write_b128 v6, v[16:19]")
    e("  s_mov_b64 exec, -1")
    for r in range(12):
        e("  v_mul_f32 v%d, v37, v%d" % (100 + r, 100 + r))
        e("  ds_write_b32 v%d, v%d" % (112 + r, 100 + r))
    e("  s_waitcnt vmcnt(0)")
    stamp(3)
    e("  ds_write_b128 v7, v[176:179]")
    e("  ds_write_b128 v7, v[180:183] offset:1024")
    e("  v_subrev_u32 v40, 256, v0")
    e("  v_lshrrev_b32 v41, 7, v40")
    e("  v_and_b32 v40, 127, v40")
    e("  v_mul_u32_u24 v42, 6144, v41")
    e("  v_add_u32 v42, %d, v42" % L_TAB)
    e("  v_lshlrev_b32 v43, 4, v40")
    e("  v_cmp_gt_u32 vcc, 8, v40")
    e("  s_mov_b32 s12, 0xffff")
    for ee in range(0, 16, 2):
        e("  v_add_u32 v44, %d, v43" % ee)
        e("  v_add_u32 v45, %d, v43" % (ee + 1))
        e("  v_cvt_f32_u32 v46, v44")
        e("  v_cvt_f32_u32 v47, v45")
        e("  v_cvt_pk_bf16_f32 v46, v46, v47")
        e("  v_and_b32 v47, s12, v46")
        e("  v_lshrrev_b32 v46, 16, v46")
        e("  v_subrev_u32 v47, 17024, v47")
        e("  v_subrev_u32 v46, 17024, v46")
        e("  v_cndmask_b32 v47, v47, v44, vcc")
        e("  v_cndmask_b32 v46, v46, v45, vcc")
        e("  v_lshl_add_u32 v%d, v47, 2, v42" % (128 + ee))
        e("  v_lshl_add_u32 v%d, v46, 2, v42" % (129 + ee))
    e("  v_mul_u32_u24 v44, %d, v41" % (2 * KRW))
    e("  v_lshl_add_u32 v44, v40, 5, v44")
    e("  v_add_u32 v44, %d, v44" % (L_K + 64))
    e("  s_waitcnt lgkmcnt(0)")
    e("  s_barrier")
    for ee in range(16):
        e("  ds_read2st64_b32 %s, v%d offset0:0 offset1:12" % (pair(48 + 2 * ee), 128 + ee))
    for p in range(8):
        e("  s_waitcnt lgkmcnt(%d)" % (14 - 2 * p))
        e("  v_add_f32 v%d, v%d, v%d" % (48 + 4 * p, 48 + 4 * p, 49 + 4 * p))
        e("  v_add_f32 v%d, v%d, v%d" % (50 + 4 * p, 50 + 4 * p, 51 + 4 * p))
        e("  v_cvt_pk_bf16_f32 v%d, v%d, v%d" % (84 + p, 48 + 4 * p, 50 + 4 * p))
    e("  ds_write_b128 v44, v[84:87]")
    e("  ds_write_b128 v44, v[88:91] offset:16")
    e("  s_waitcnt lgkmcnt(0)")
    e("  s_setprio 0")
    e("  s_barrier")
    stamp(4)
    e("  s_cmp_lg_u32 s3, 4")
    e("  s_cbranch_scc1 L_combine")
    e("  v_mov_b32 v10, %d" % (L_CNT + 8))
    e("  ds_read_b32 v11, v10")
    e("  s_lshl_b32 s8, s2, 7")
    e("  s_add_u32 s8, s8, 0x%x" % (WS_MB + 4))
    e("  v_mov_b32 v10, s8")
    e("  s_waitcnt lgkmcnt(0)")
    poll("L_pollG", 10, 11)
    e("  v_lshlrev_b32 v40, 4, v1")
    e("  v_add_u32 v41, 0x%x, v40" % WS_G)
    for c in range(8):
        e("  global_load_dwordx4 %s, v41, s[52:53] offset:%d sc1" % (quad(48 + 4 * c), 1024 * c if c < 4 else 0))
        if c == 3:
            e("  v_add_u32 v41, 4096, v41")
    L[-4:] = [x.replace("offset:0 sc1", "offset:%d sc1" % (1024 * i)) for i, x in enumerate(L[-4:])]
    for c in range(8):
        e("  s_waitcnt vmcnt(%d)" % (7 - c))
        e("  ds_write_b128 v40, %s offset:%d" % (quad(48 + 4 * c), L_G + 1024 * c))
    stamp(5)
    stamp(6)

    e("L_combine:")
    e("  s_lshl_b32 s8, s6, 1")
    e("  v_mov_b32 v7, s8")
    e("  global_load_dword v200, v7, s[32:33]")
    e("  global_load_dword v201, v7, s[44:45]")
    e("  s_waitcnt lgkmcnt(0)")
    e("  s_barrier")
    stamp(7)
    e("  v_lshlrev_b32 v5, 3, v0")
    e("  v_sub_u32 v6, %d, v5" % (L_U + 4088))
    e("  v_lshlrev_b32 v4, 4, v0")
    for w in range(4):
        e("  ds_read_b64 %s, v5 offset:%d" % (pair(32 + 2 * w), L_Y + 4096 * w))
    for w in range(4):
        e("  ds_read_b64 %s, v6 offset:%d" % (pair(40 + 2 * w), RW * w))
    e("  ds_read_b128 v[48:51], v4 offset:%d" % L_G)
    e("  v_lshlrev_b32 v7, 12, v0")
    e("  v_add_u32 v7, s8, v7")
    e("  s_waitcnt vmcnt(0)")
    e("  v_lshlrev_b32 v64, 16, v200")
    e("  v_and_b32 v65, s7, v200")
    e("  v_lshlrev_b32 v66, 16, v201")
    e("  v_and_b32 v67, s7, v201")
    e("  s_waitcnt lgkmcnt(0)")
    for k in range(4):
        B = 70 + 20 * (k & 1)
        YA, YBp, U, KV, GP, T1, T2, tmp = B, B + 2, B + 4, B + 6, B + 8, B + 10, B + 12, B + 14
        unp(YA, 32 + (k >> 1), k & 1)
        unp(YA + 1, 36 + (k >> 1), k & 1)
        unp(YBp, 34 + (k >> 1), k & 1)
        unp(YBp + 1, 38 + (k >> 1), k & 1)
        ee = 3 - k
        unp(U, 40 + (ee >> 1), ee & 1)
        unp(U + 1, 44 + (ee >> 1), ee & 1)
        unp(KV, 42 + (ee >> 1), ee & 1)
        unp(KV + 1, 46 + (ee >> 1), ee & 1)
        unp(GP, 48 + k, 0)
        unp(GP + 1, 48 + k, 1)
        e("  v_pk_mul_f32 %s, %s, v[64:65]" % (pair(T1), pair(U)))
        e("  v_pk_mul_f32 %s, %s, v[66:67]" % (pair(T2), pair(KV)))
        round_pair(T1, T1, tmp)
        round_pair(T2, T2, tmp + 1)
        e("  v_pk_add_f32 %s, %s, %s" % (pair(T1), pair(YA), pair(T1)))
        e("  v_pk_add_f32 %s, %s, %s" % (pair(T2), pair(YBp), pair(T2)))
        round_pair(T1, T1, tmp)
        round_pair(T2, T2, tmp + 1)
        e("  v_pk_mul_f32 %s, %s, %s" % (pair(T2), pair(U), pair(T2)))
        e("  v_pk_mul_f32 %s, %s, %s op_sel:[0,0] op_sel_hi:[1,0]" % (pair(T1), pair(T1), pair(GP)))
        round_pair(T2, T2, tmp + 1)
        round_pair(T1, T1, tmp)
        e("  v_pk_mul_f32 %s, %s, %s op_sel:[0,1] op_sel_hi:[1,1]" % (pair(T2), pair(T2), pair(GP)))
        round_pair(T2, T2, tmp + 1)
        e("  v_pk_add_f32 %s, %s, %s" % (pair(T1), pair(T1), pair(T2)))
        e("  v_cvt_pk_bf16_f32 v%d, v%d, v%d" % (116 + k, T1, T1 + 1))
        e("  global_store_dword v7, v%d, s[48:49] offset:%d" % (116 + k, 1024 * k))
    stamp(8)
    stamp_flush(9)
    e("L_end:")
    e("  s_endpgm")

def main():
    e(HEADER.rstrip("\n"))
    e("; @launch grid=(256,1,1) block=(512,1,1) lds=%d" % LDS_TOTAL)
    e('.amdgcn_target "amdgcn-amd-amdhsa--gfx950"')
    e(".text")
    gen()
    e('.section .rodata,"a"')
    e(".p2align 6")
    e(".amdhsa_kernel %s" % KN)
    e("  .amdhsa_next_free_vgpr 216")
    e("  .amdhsa_next_free_sgpr 102")
    e("  .amdhsa_accum_offset 216")
    e("  .amdhsa_group_segment_fixed_size 0")
    e("  .amdhsa_kernarg_size 152")
    e("  .amdhsa_user_sgpr_count 2")
    e("  .amdhsa_user_sgpr_kernarg_segment_ptr 1")
    e("  .amdhsa_system_sgpr_workgroup_id_x 1")
    e(".end_amdhsa_kernel")
    args = [a for a in sys.argv[1:] if not a.startswith("--")]
    open(args[0] if args else OUT, "w").write("\n".join(L) + "\n")

main()
```

```python
import struct, sys, math

NAME = "gated_mix__ssm_conv_s4__ssm_conv_h3__prompt"
OUT = "cdna_kernels/%s.s" % NAME
KN = NAME + "_kernel"

def f2u(x):
    return struct.unpack("<I", struct.pack("<f", x))[0]

L = []
def e(s=""):
    L.append(s)

STAMP = "--stamp" in sys.argv
NOWARM = "--nowarm" in sys.argv
NOPF = "--nopf" in sys.argv
NPF = 2
WS_UT, WS_KVT, WS_G, WS_MB, WS_ST = 0x000000, 0x200000, 0x600000, 0x700000, 0x800000

DBGT = "--dbgt" in sys.argv
DBGMAP = {0: 9, 1: 10, 3: 11, 5: 12, 7: 13, 9: 14}
def stamp(i):
    if DBGT:
        if i == 0:
            e("  s_mov_b32 s74, 0")
        if i in DBGMAP:
            e("  s_memrealtime s[%d:%d]" % (60 + 2 * i, 61 + 2 * i))
        return
    if STAMP:
        e("  s_memrealtime s[%d:%d]" % (60 + 2 * i, 61 + 2 * i))
        e("  s_memtime s[%d:%d]" % (80 + 2 * i, 81 + 2 * i))
def stamp_flush(n):
    if DBGT:
        e("  s_waitcnt lgkmcnt(0)")
        e("  s_mov_b64 exec, 1")
        e("  s_not_b32 s60, s60")
        for i, d in DBGMAP.items():
            e("  v_mov_b32 v124, %d" % (4 * d))
            e("  v_mov_b32 v125, s%d" % (60 + 2 * i))
            e("  global_atomic_umax v124, v125, s[50:51] sc1")
            e("  s_nop 1")
        return
    if not STAMP:
        return
    e("  s_waitcnt vmcnt(0) lgkmcnt(0)")
    e("  s_mov_b64 exec, 1")
    e("  v_lshrrev_b32 v124, 6, v0")
    e("  v_lshlrev_b32 v124, 8, v124")
    e("  s_lshl_b32 s100, s2, 11")
    e("  s_add_u32 s100, s100, 0x%x" % WS_ST)
    e("  v_add_u32 v124, s100, v124")
    for i in range(n):
        e("  v_mov_b32 v126, s%d" % (60 + 2 * i))
        e("  v_mov_b32 v127, s%d" % (61 + 2 * i))
        e("  global_store_dwordx2 v124, v[126:127], s[52:53] offset:%d" % (8 * i))
        e("  s_nop 1")
        e("  v_mov_b32 v126, s%d" % (80 + 2 * i))
        e("  v_mov_b32 v127, s%d" % (81 + 2 * i))
        e("  global_store_dwordx2 v124, v[126:127], s[52:53] offset:%d" % (128 + 8 * i))
        e("  s_nop 1")

HEADER = open("cdna_kernels/%s.s.ref" % NAME).read().split("; Override launch")[0]

def pair(r):
    return "v[%d:%d]" % (r, r + 1)
def quad(r):
    return "v[%d:%d]" % (r, r + 3)

S_M = "s7"
S_LO = "s54"
S_ONES = "s55"
S_P0 = "s56"
S_P1 = "s57"

CPY = 4640
RW = 9216
KRW = 4224
L_TAB = 0
L_CNT = 24576
L_PT = 24704
L_G = L_PT + 4096
L_Y = L_G + 8192
L_U = L_Y + 4 * 4096
L_K = L_U + 4 * RW
LDS_TOTAL = L_K + 4 * KRW
L_TT = L_G
TTW = 2560

SPIN_MAX = 1 << 18

def dot2(d, a, b, c="0"):
    e("  v_dot2_f32_bf16 v%d, %s, %s, %s" % (d, a, b, c))
def v(r):
    return "v%d" % r

def poll(label, off_reg, v0_reg, data=(9, 14, 15, 16)):
    e("  s_mov_b32 s58, 0")
    e("  s_mov_b64 exec, 1")
    for d in data[:3]:
        e("  global_load_dword v%d, v%d, s[52:53] sc1" % (d, off_reg))
        e("  s_sleep 1")
    e("%s:" % label)
    for i in range(4):
        e("  global_load_dword v%d, v%d, s[52:53] sc1" % (data[(i + 3) % 4], off_reg))
        e("  s_waitcnt vmcnt(3)")
        e("  v_cmp_eq_u32 vcc, v%d, v%d" % (v0_reg, data[i]))
        e("  s_add_u32 s58, s58, 1")
        e("  s_nop 0")
        e("  s_cbranch_vccz %s_done" % label)
        e("  s_sleep 1")
    e("  s_cmp_lt_u32 s58, %d" % SPIN_MAX)
    e("  s_cbranch_scc1 %s" % label)
    e("%s_done:" % label)
    e("  s_waitcnt vmcnt(0)")
    e("  s_mov_b64 exec, -1")

def chunk_end():
    e("  s_cbranch_execz L_warm_ret")

def PART2():
    e("  s_cmp_eq_u32 s34, 0")
    e("  s_cbranch_scc1 L_skip_arr2")
    e("  s_waitcnt vmcnt(0)")
    e("  s_mov_b64 exec, 1")
    e("  v_and_b32 v51, 31, v51")
    e("  v_cmp_eq_u32 vcc, 31, v51")
    e("  s_and_b64 exec, exec, vcc")
    e("  s_cbranch_execz L_arr_done")
    e("  s_mov_b64 exec, 0xffffffff")
    e("  v_lshlrev_b32 v52, 10, v1")
    e("  s_lshl_b32 s8, s4, 7")
    e("  s_add_u32 s8, s8, 0x%x" % WS_MB)
    e("  v_add_u32 v52, s8, v52")
    e("  global_atomic_add v52, v49, s[52:53] sc1")
    e("L_arr_done:")
    e("  s_mov_b64 exec, -1")

def gen():
    e(".globl %s" % KN)
    e(".p2align 8")
    e(".type %s,@function" % KN)
    e("%s:" % KN)
    e("  s_cmp_ge_u32 s2, 256")
    e("  s_cbranch_scc1 L_end")
    stamp(0)
    e("  s_load_dwordx16 s[16:31], s[0:1], 0")
    e("  s_load_dwordx16 s[32:47], s[0:1], 64")
    e("  s_load_dwordx4 s[48:51], s[0:1], 128")
    e("  s_load_dwordx2 s[52:53], s[0:1], 144")
    if not NOPF:
        e("  s_getpc_b64 s[8:9]")
        e("L_pc:")
        e("  v_lshlrev_b32 v4, 4, v0")
        for c in range(NPF):
            e("  global_load_dwordx4 v[%d:%d], v4, s[8:9]" % (100 + 4 * c, 103 + 4 * c))
            if c < NPF - 1:
                e("  v_add_u32 v4, 8192, v4")
                e("  v_min_u32 v4, L_end-L_pc-16, v4")
    e("  v_lshrrev_b32 v4, 6, v0")
    e("  v_and_b32 v1, 63, v0")
    e("  v_readfirstlane_b32 s3, v4")
    e("  v_and_b32 v2, 15, v1")
    e("  v_lshrrev_b32 v3, 4, v1")
    e("  s_and_b32 s4, s2, 7")
    e("  s_lshr_b32 s5, s2, 3")
    e("  s_and_b32 s8, s3, 2")
    e("  s_and_b32 s9, s3, 1")
    e("  s_lshl_b32 s10, s5, 6")
    e("  s_lshl_b32 s8, s8, 4")
    e("  s_add_u32 s10, s10, s8")
    e("  s_lshl_b32 s11, s4, 6")
    e("  s_lshl_b32 s9, s9, 5")
    e("  s_add_u32 s11, s11, s9")
    e("  s_lshl_b32 s12, s10, 10")
    e("  s_lshl_b32 s13, s11, 1")
    e("  s_add_u32 s12, s12, s13")
    e("  v_lshlrev_b32 v5, 13, v3")
    e("  v_lshl_add_u32 v5, v2, 2, v5")
    e("  v_add_u32 v5, s12, v5")
    e("  v_add_u32 v6, 4096, v5")
    e("  s_lshl_b32 s6, s4, 6")
    e("  s_lshl_b32 s8, s5, 1")
    e("  s_add_u32 s6, s6, s8")
    e("  s_lshr_b32 s8, s3, 2")
    e("  s_add_u32 s8, s8, s6")
    e("  s_and_b32 s9, s3, 3")
    e("  s_lshl_b32 s12, s8, 8")
    e("  s_lshl_b32 s13, s9, 6")
    e("  s_add_u32 s12, s12, s13")
    e("  v_and_b32 v8, 31, v1")
    e("  v_lshlrev_b32 v8, 1, v8")
    e("  v_add_u32 v8, s12, v8")
    e("  s_lshl_b32 s13, s8, 1")
    e("  v_mov_b32 v9, s13")
    e("  s_cmp_ge_u32 s3, 4")
    e("  s_cbranch_scc1 L_uload")
    e("  v_subrev_u32 v7, 3072, v5")
    e("  s_lshl_b32 s13, s11, 3")
    e("  v_lshlrev_b32 v4, 4, v2")
    e("  v_add_u32 v4, s13, v4")
    e("  s_lshl_b32 s8, s2, 7")
    e("  s_add_u32 s8, s8, 0x%x" % WS_MB)
    e("  v_mov_b32 v242, s8")
    e("  v_mov_b32 v243, 0")
    e("  s_waitcnt lgkmcnt(0)")
    e("  s_mov_b32 s12, s36")
    e("  s_and_b32 s13, s37, 0xffff")
    e("  s_mov_b32 s14, 0x200000")
    e("  s_mov_b32 s15, 0x00020000")
    e("  global_load_dwordx4 v[30:33], v4, s[40:41]")
    for h in range(3):
        e("  buffer_load_dword v%d, v7, s[12:15], 0 offen offset:%d" % (10 + h, 1024 * h))
    for r in range(8):
        e("  buffer_load_dword v%d, v%d, s[12:15], 0 offen offset:%d" % (13 + r, 5 + (r >> 2), 1024 * (r & 3)))
    for r in range(8):
        e("  global_load_dword v%d, v%d, s[38:39] offset:%d" % (21 + r, 5 + (r >> 2), 1024 * (r & 3)))
    e("  global_load_dwordx2 v[240:241], v242, s[52:53] sc1")
    e("  s_branch L_pload")
    e("L_uload:")
    e("  s_lshl_b32 s8, s2, 3")
    e("  s_lshl_b32 s12, s9, 1")
    e("  s_add_u32 s58, s8, s12")
    e("  s_lshl_b32 s8, s58, 10")
    e("  v_lshlrev_b32 v4, 4, v1")
    e("  v_add_u32 v7, s8, v4")
    e("  s_lshr_b32 s8, s9, 1")
    e("  s_add_u32 s8, s8, s6")
    e("  s_lshl_b32 s8, s8, 12")
    e("  s_and_b32 s12, s9, 1")
    e("  s_lshl_b32 s12, s12, 11")
    e("  s_add_u32 s8, s8, s12")
    e("  v_add_u32 v242, s8, v4")
    e("  v_mov_b32 v240, 0")
    e("  v_mov_b32 v241, 0")
    e("  v_mov_b32 v243, %d" % L_CNT)
    e("  ds_write_b64 v243, v[240:241]")
    e("  s_waitcnt lgkmcnt(0)")
    for r in range(8):
        e("  global_load_dword v%d, v%d, s[16:17] offset:%d" % (10 + r, 5 + (r >> 2), 1024 * (r & 3)))
    e("  v_mov_b32 v243, v7")
    e("  v_mov_b32 v241, v4")
    e("L_pload:")
    e("  global_load_ushort v238, v9, s[30:31]")
    for k in range(6):
        e("  global_load_ushort v%d, v8, s[%d:%d]" % (232 + k, 18 + 2 * k, 19 + 2 * k))
    e("  s_mov_b32 %s, 0xffff0000" % S_M)
    e("  s_mov_b32 %s, 0xffff" % S_LO)
    e("  s_mov_b32 %s, 0x3f803f80" % S_ONES)
    e("  s_mov_b32 %s, 0x05040100" % S_P0)
    e("  s_mov_b32 %s, 0x07060302" % S_P1)
    e("  s_mul_i32 s8, s3, %d" % TTW)
    e("  s_add_u32 s8, s8, %d" % L_TT)
    e("  v_mul_u32_u24 v4, 160, v2")
    e("  v_lshlrev_b32 v42, 4, v3")
    e("  v_sub_u32 v4, v4, v42")
    e("  v_add3_u32 v4, v4, s8, 48")
    e("  v_lshrrev_b32 v42, 2, v1")
    e("  v_and_b32 v43, 3, v1")
    e("  v_mul_u32_u24 v5, 80, v42")
    e("  v_lshl_add_u32 v5, v43, 4, v5")
    e("  v_add_u32 v5, s8, v5")
    e("  s_lshl_b32 s8, s11, 12")
    e("  s_sub_u32 s9, 2016, s10")
    e("  s_lshl_b32 s9, s9, 1")
    e("  s_add_u32 s8, s8, s9")
    e("  s_cmp_lt_u32 s3, 4")
    e("  s_cselect_b32 s9, 0x%x, 0" % WS_KVT)
    e("  s_add_u32 s8, s8, s9")
    e("  v_lshlrev_b32 v42, 12, v42")
    e("  v_lshl_add_u32 v42, v43, 4, v42")
    e("  v_add_u32 v6, s8, v42")
    e("  v_add_u32 v7, 0x10000, v6")
    e("  s_barrier")
    if not NOWARM:
        e("  s_mov_b64 exec, 0")
        for wv, lab in enumerate(["L_kv0", "L_kv1", "L_kv2", "L_kv3", "L_uc0", "L_kp", "L_kb0", "L_kb2"]):
            e("  s_cmp_eq_u32 s3, %d" % wv)
            e("  s_cbranch_scc1 %s" % lab)
    e("L_warm_ret:")
    e("  s_mov_b64 exec, -1")
    for r in range(220, 232):
        e("  v_mov_b32 v%d, 0" % r)
    e("  s_cmp_ge_u32 s3, 4")
    e("  s_cbranch_scc1 L_uphase")

    e("  s_setprio 2")
    e("  s_waitcnt vmcnt(16)")
    stamp(1)
    e("L_kv0:")
    WL = [34, 35, 36, 37]; WH = [38, 39, 40, 41]
    e("  v_and_b32 v34, %s, v30" % S_LO)
    e("  v_lshrrev_b32 v35, 16, v30")
    e("  v_and_b32 v36, %s, v31" % S_LO)
    e("  v_lshrrev_b32 v37, 16, v31")
    e("  v_lshlrev_b32 v38, 16, v32")
    e("  v_and_b32 v39, %s, v32" % S_M)
    e("  v_lshlrev_b32 v40, 16, v33")
    e("  v_and_b32 v41, %s, v33" % S_M)
    def kvblock(R, labs):
        rows = range(4 * R, 4 * R + 4)
        A, B, C, D, T = 44, 52, 60, 68, 76
        ix = lambda r, c: 2 * (r & 3) + c
        for r in rows:
            for c in range(2):
                dot2(A + ix(r, c), v(10 + r), v((WL, WH)[c][3]))
                dot2(B + ix(r, c), v(10 + r + 1), v((WL, WH)[c][2]))
        for r in rows:
            for c in range(2):
                dot2(C + ix(r, c), v(10 + r + 2), v((WL, WH)[c][1]))
                e("  v_cvt_pk_bf16_f32 v%d, v%d, v%d" % (T + ix(r, c), A + ix(r, c), B + ix(r, c)))
        for r in rows:
            for c in range(2):
                dot2(D + ix(r, c), v(10 + r + 3), v((WL, WH)[c][0]))
                dot2(A + ix(r, c), v(T + ix(r, c)), S_ONES)
        chunk_end()
        e("%s:" % labs[0])
        for r in rows:
            for c in range(2):
                e("  v_cvt_pk_bf16_f32 v%d, v%d, v%d" % (T + ix(r, c), A + ix(r, c), C + ix(r, c)))
        for r in rows:
            for c in range(2):
                dot2(A + ix(r, c), v(T + ix(r, c)), S_ONES)
        for r in rows:
            for c in range(2):
                e("  v_cvt_pk_bf16_f32 v%d, v%d, v%d" % (T + ix(r, c), A + ix(r, c), D + ix(r, c)))
        for r in rows:
            for c in range(2):
                dot2(A + ix(r, c), v(T + ix(r, c)), S_ONES)
        if R == 0:
            e("  s_cbranch_execz L_kvskipw")
            e("  s_waitcnt vmcnt(8)")
            e("L_kvskipw:")
        for r in rows:
            e("  v_and_b32 v%d, %s, v%d" % (B + ix(r, 0), S_LO, 21 + r))
            e("  v_and_b32 v%d, %s, v%d" % (B + ix(r, 1), S_M, 21 + r))
        for r in rows:
            e("  v_cvt_pk_bf16_f32 v%d, v%d, v%d" % (T + (r & 3), A + ix(r, 0), A + ix(r, 1)))
        for r in rows:
            for c in range(2):
                dot2(C + ix(r, c), v(T + (r & 3)), v(B + ix(r, c)))
        e("  s_nop 1")
        for r in rows:
            e("  v_cvt_pk_bf16_f32 v%d, v%d, v%d" % (88 + r, C + ix(r, 0), C + ix(r, 1)))
        chunk_end()
        if labs[1]:
            e("%s:" % labs[1])
    kvblock(0, ["L_kv1", "L_kv2"])
    kvblock(1, ["L_kv3", None])
    for m in range(4):
        e("  v_perm_b32 v%d, v%d, v%d, %s" % (44 + m, 88 + 6 - 2 * m, 88 + 7 - 2 * m, S_P0))
        e("  v_perm_b32 v%d, v%d, v%d, %s" % (48 + m, 88 + 6 - 2 * m, 88 + 7 - 2 * m, S_P1))
    e("  ds_write_b128 v4, v[44:47]")
    e("  ds_write_b128 v4, v[48:51] offset:80")
    e("  ds_read_b128 v[52:55], v5")
    e("  ds_read_b128 v[56:59], v5 offset:1280")
    e("  s_waitcnt vmcnt(7)")
    e("  v_mov_b32 v10, %d" % (L_CNT + 8))
    e("  ds_write_b32 v10, v241")
    e("  s_waitcnt lgkmcnt(2)")
    e("  global_store_dwordx4 v6, v[52:55], s[52:53] sc1")
    e("  s_waitcnt lgkmcnt(1)")
    e("  global_store_dwordx4 v7, v[56:59], s[52:53] sc1")
    e("  s_setprio 0")
    stamp(2)
    e("  s_waitcnt vmcnt(2)")
    e("  s_branch L_kgen")

    e("L_uphase:")
    e("  s_setprio 2")
    e("  s_waitcnt vmcnt(7)")
    stamp(1)
    for m in range(4):
        e("  v_perm_b32 v%d, v%d, v%d, %s" % (44 + m, 10 + 6 - 2 * m, 10 + 7 - 2 * m, S_P0))
        e("  v_perm_b32 v%d, v%d, v%d, %s" % (48 + m, 10 + 6 - 2 * m, 10 + 7 - 2 * m, S_P1))
    e("  ds_write_b128 v4, v[44:47]")
    e("  ds_write_b128 v4, v[48:51] offset:80")
    e("  ds_read_b128 v[52:55], v5")
    e("  ds_read_b128 v[56:59], v5 offset:1280")
    e("  s_waitcnt lgkmcnt(1)")
    e("  global_store_dwordx4 v6, v[52:55], s[52:53] sc1")
    e("  s_waitcnt lgkmcnt(0)")
    e("  global_store_dwordx4 v7, v[56:59], s[52:53] sc1")
    e("  global_load_dwordx4 v[244:247], v242, s[42:43]")
    e("  global_load_dwordx4 v[248:251], v242, s[42:43] offset:1024")
    e("  global_load_dwordx4 v[124:127], v243, s[16:17]")
    e("  global_load_dwordx4 v[128:131], v243, s[16:17] offset:1024")
    e("  global_load_dwordx4 v[132:135], v241, s[46:47]")
    e("  s_setprio 0")
    stamp(2)
    e("  s_waitcnt vmcnt(7)")

    e("L_kgen:")
    e("  v_lshrrev_b32 v42, 3, v2")
    e("  v_and_b32 v43, 7, v2")
    e("  v_lshl_add_u32 v42, v42, 7, v43")
    e("  v_cvt_f32_u32 v200, v42")
    e("  v_lshrrev_b32 v42, 2, v2")
    e("  v_and_b32 v43, 3, v2")
    e("  v_lshlrev_b32 v43, 1, v43")
    e("  v_lshl_add_u32 v42, v42, 7, v43")
    e("  v_add_u32 v42, 256, v42")
    e("  v_lshrrev_b32 v44, 1, v2")
    e("  v_and_b32 v43, 1, v2")
    e("  v_lshlrev_b32 v43, 2, v43")
    e("  v_cmp_gt_u32 vcc, 8, v2")
    e("  v_lshl_add_u32 v44, v44, 7, v43")
    e("  v_lshlrev_b32 v45, 7, v2")
    e("  v_cndmask_b32 v42, v44, v42, vcc")
    e("  v_cvt_f32_u32 v201, v42")
    e("  v_add_u32 v45, 1024, v45")
    e("  v_cvt_f32_u32 v202, v45")
    e("  v_lshlrev_b32 v42, 3, v2")
    e("  v_cvt_f32_u32 v203, v42")
    e("  s_mul_i32 s12, s3, 3072")
    e("  v_mov_b32 v46, s12")
    e("  v_lshrrev_b32 v42, 1, v3")
    e("  v_and_b32 v43, 1, v3")
    e("  v_lshlrev_b32 v43, 2, v43")
    e("  v_lshl_add_u32 v42, v42, 7, v43")
    e("  v_lshl_add_u32 v42, v2, 3, v42")
    e("  v_lshl_add_u32 v204, v42, 2, v46")
    e("  v_lshlrev_b32 v42, 6, v3")
    e("  v_add_u32 v42, 256, v42")
    e("  v_lshl_add_u32 v43, v2, 2, v42")
    e("  v_lshl_add_u32 v44, v2, 1, v42")
    e("  v_cmp_gt_u32 vcc, 2, v3")
    e("  v_add_u32 v45, 2, v43")
    e("  v_add_u32 v47, 32, v44")
    e("  v_cndmask_b32 v43, v44, v43, vcc")
    e("  v_cndmask_b32 v45, v47, v45, vcc")
    e("  v_lshl_add_u32 v205, v43, 2, v46")
    e("  v_lshl_add_u32 v206, v45, 2, v46")
    e("  v_lshlrev_b32 v42, 6, v3")
    e("  v_add3_u32 v42, v42, v2, 0")
    e("  v_add_u32 v42, 512, v42")
    e("  v_lshl_add_u32 v207, v42, 2, v46")
    e("  s_lshl_b32 s12, s3, 9")
    e("  s_add_u32 s12, s12, %d" % L_PT)
    e("  v_and_b32 v42, 31, v1")
    e("  v_lshlrev_b32 v42, 4, v42")
    e("  v_add_u32 v216, s12, v42")
    e("  v_lshlrev_b32 v42, 6, v3")
    e("  v_add_u32 v217, s12, v42")
    L2E = 1.4426950408889634
    L2E_HI = struct.unpack("<f", struct.pack("<I", f2u(L2E) & 0xFFFFFF00))[0]
    L2E_LO = L2E - L2E_HI
    e("L_kp:")
    for k in range(7):
        e("  v_lshlrev_b32 v%d, 16, v%d" % (232 + k, 232 + k))
    e("  v_mul_f32 v32, 0x%08x, v238" % f2u(L2E_HI))
    e("  v_mul_f32 v33, 0x%08x, v238" % f2u(L2E_LO * math.log(2.0)))
    e("  v_exp_f32 v32, v32")
    e("  s_nop 0")
    e("  v_fma_f32 v32, v32, v33, v32")
    e("  v_cvt_pk_bf16_f32 v32, v32, v32")
    e("  v_lshlrev_b32 v34, 16, v32")
    e("  v_mul_f32 v32, 0x%08x, v34" % f2u(L2E))
    e("  v_mul_f32 v33, 0x%08x, v34" % f2u(1.0 / (2.0 * math.pi)))
    e("  v_pk_mul_f32 v[40:41], v[232:233], v[32:33]")
    e("  v_pk_mul_f32 v[12:13], v[234:235], v[34:35] op_sel:[0,0] op_sel_hi:[1,0]")
    e("  v_pk_mul_f32 v[16:17], v[236:237], v[12:13] op_sel:[0,0] op_sel_hi:[0,1]")
    e("  v_pk_fma_f32 v[42:43], v[236:237], v[12:13], v[16:17] op_sel:[1,1,0] op_sel_hi:[1,0,1] neg_lo:[1,0,0]")
    e("  v_max_f32 v18, |v42|, |v43|")
    e("  s_nop 1")
    for sh in (1, 2, 4, 8):
        e("  v_max_f32_dpp v18, v18, v18 row_shr:%d row_mask:0xf bank_mask:0xf bound_ctrl:0" % sh)
        e("  s_nop 1")
    e("  v_max_f32_dpp v18, v18, v18 row_bcast:15 row_mask:0xa bank_mask:0xf")
    e("  s_nop 1")
    chunk_end()
    e("  v_readlane_b32 s12, v18, 31")
    e("  s_nop 1")
    e("  v_mov_b32 v18, s12")
    e("  v_frexp_exp_i32_f32 v18, v18")
    e("  v_sub_u32 v19, 0, v18")
    e("  v_ldexp_f32 v218, 1.0, v18")
    e("  v_ldexp_f32 v42, v42, v19")
    e("  v_ldexp_f32 v43, v43, v19")
    e("  ds_write_b128 v216, v[40:43]")
    e("  ds_read_b128 v[40:43], v217")
    e("  s_mov_b32 s59, 0")
    e("L_kloop:")
    A0, B0 = 100, 112
    for mm in range(4):
        P = 40 + 4 * (mm & 1)
        Z, CB = P, P + 2
        e("  s_waitcnt lgkmcnt(0)")
        if mm in (0, 2):
            e("L_kb%d:" % mm)
        nxt = (mm + 1) * 16 if mm < 3 else 256
        e("  ds_read_b128 %s, v217 offset:%d" % (quad(40 + 4 * ((mm + 1) & 1)), nxt))
        lam = [("v[200:201]", 0), ("v[200:201]", 1), ("v[202:203]", 0), ("v[202:203]", 1)]
        for a in range(4):
            l, h = lam[a]
            e("  v_pk_mul_f32 %s, %s, %s op_sel:[0,%d] op_sel_hi:[1,%d]" % (pair(92 + 2 * a), pair(Z), l, h, h))
        for a in range(4):
            e("  v_fract_f32 v%d, v%d" % (24 + a, 93 + 2 * a))
        for a in range(4):
            e("  v_exp_f32 v%d, v%d" % (16 + 2 * a, 92 + 2 * a))
            e("  v_cos_f32 v%d, v%d" % (8 + 2 * a, 24 + a))
            e("  v_sin_f32 v%d, v%d" % (9 + 2 * a, 24 + a))
        e("  s_nop 0")
        for a in range(4):
            e("  v_pk_mul_f32 %s, %s, %s op_sel:[0,0] op_sel_hi:[1,0]" % (pair(76 + 2 * a), pair(8 + 2 * a), pair(16 + 2 * a)))
        e("  v_pk_mul_f32 v[30:31], v[82:83], %s op_sel:[0,0] op_sel_hi:[0,1]" % pair(CB))
        for a in range(3):
            e("  v_cvt_pk_f16_f32 v%d, v%d, v%d" % (A0 + 4 * a + mm, 76 + 2 * a, 77 + 2 * a))
        e("  v_pk_fma_f32 v[30:31], v[82:83], %s, v[30:31] op_sel:[1,1,0] op_sel_hi:[1,0,1] neg_lo:[1,0,0] neg_hi:[1,0,1]" % pair(CB))
        e("  v_cvt_pk_f16_f32 v%d, v30, v31" % (B0 + mm))
        if mm in (1, 3):
            chunk_end()
        if mm == 1:
            e("  s_cmp_eq_u32 s59, 0")
            e("  s_cbranch_scc1 L_skip_arr2")
            PART2()
            e("L_skip_arr2:")
    e("  v_add_u32 v217, 256, v217")
    e("  s_nop 0")
    for t in range(3):
        e("  v_mfma_f32_16x16x32_f16 %s, %s, %s, %s" % (quad(220 + 4 * t), quad(A0 + 4 * t), quad(B0), quad(220 + 4 * t)))
    e("  s_cmp_lg_u32 s59, 0")
    e("  s_cbranch_scc1 L_kdone")
    e("  s_mov_b32 s59, 1")
    e("  s_mov_b32 s34, 0")
    e("  v_mov_b32 v48, %d" % L_CNT)
    e("  v_mov_b32 v49, 1")
    e("  v_mov_b32 v51, 0")
    e("  s_lshr_b32 s8, s4, 1")
    e("  s_lshl_b32 s8, s8, 6")
    e("  s_and_b32 s9, s4, 1")
    e("  s_lshl_b32 s9, s9, 4")
    e("  s_add_u32 s8, s8, s9")
    e("  v_mov_b32 v50, s8")
    e("  s_waitcnt vmcnt(5)")
    e("  s_cmp_ge_u32 s3, 4")
    e("  s_cbranch_scc1 L_arr0")
    e("  s_waitcnt vmcnt(0)")
    e("L_arr0:")
    stamp(3)
    e("  s_mov_b64 exec, 1")
    e("  ds_add_rtn_u32 v52, v48, v49")
    e("  s_waitcnt lgkmcnt(0)")
    e("  v_cmp_eq_u32 vcc, 7, v52")
    e("  s_and_b64 exec, exec, vcc")
    e("  s_cbranch_execz L_arr1")
    e("  global_atomic_add v51, v50, v49, s[50:51] sc0 sc1")
    e("  s_mov_b32 s34, 1")
    e("L_arr1:")
    e("  s_mov_b64 exec, -1")
    e("  s_branch L_kloop")
    e("L_kdone:")
    stamp(4)
    for r in range(12):
        e("  v_mul_f32 v%d, v218, v%d" % (220 + r, 220 + r))
    e("  ds_write_b128 v204, v[220:223]")
    e("  ds_write_b64 v205, v[224:225]")
    e("  ds_write_b64 v206, v[226:227]")
    for r in range(4):
        e("  ds_write_b32 v207, v%d offset:%d" % (228 + r, 64 * r))
    e("  s_cmp_lt_u32 s3, 4")
    e("  s_cbranch_scc1 L_nogate")
    e("  s_waitcnt vmcnt(0)")
    e("  s_and_b32 s9, s3, 3")
    e("  s_or_b32 s12, s9, 1")
    e("  s_mul_i32 s12, s12, %d" % KRW)
    e("  s_and_b32 s13, s9, 1")
    e("  s_lshl_b32 s13, s13, 11")
    e("  s_add_u32 s12, s12, s13")
    e("  s_add_u32 s12, s12, %d" % (L_K + 64))
    e("  v_lshlrev_b32 v8, 4, v1")
    e("  v_add_u32 v9, s12, v8")
    e("  s_mul_i32 s12, s9, %d" % KRW)
    e("  s_add_u32 s12, s12, %d" % L_K)
    e("  v_add_u32 v8, s12, v8")
    for r in range(4):
        e("  v_mov_b32 v%d, 0" % (16 + r))
    e("  s_mov_b64 exec, 0xf")
    e("  ds_write_b128 v8, v[16:19]")
    e("  s_mov_b64 exec, -1")
    e("  ds_write_b128 v9, v[244:247]")
    e("  ds_write_b128 v9, v[248:251] offset:1024")

    e("L_uc0:")
    for dd in range(4):
        e("  v_and_b32 v%d, %s, v%d" % (60 + 2 * dd, S_LO, 132 + dd))
        e("  v_and_b32 v%d, %s, v%d" % (61 + 2 * dd, S_M, 132 + dd))
    for rr in range(2):
        for dd in range(4):
            dot2(68 + 8 * rr + 2 * dd, v(124 + 4 * rr + dd), v(60 + 2 * dd))
            dot2(69 + 8 * rr + 2 * dd, v(124 + 4 * rr + dd), v(61 + 2 * dd))
    for rr in range(2):
        for dd in range(4):
            e("  v_cvt_pk_bf16_f32 v%d, v%d, v%d" % (84 + 4 * rr + dd, 68 + 8 * rr + 2 * dd, 69 + 8 * rr + 2 * dd))
    for dd in range(4):
        for rr in range(2):
            dot2(22 + rr, v(84 + 4 * rr + dd), S_ONES, "0" if dd == 0 else v(22 + rr))
    e("  s_nop 2")
    for sh in (1, 2, 4, 8):
        for rr in range(2):
            e("  v_add_f32_dpp v%d, v%d, v%d row_shr:%d row_mask:0xf bank_mask:0xf bound_ctrl:0" % (22 + rr, 22 + rr, 22 + rr, sh))
        e("  s_nop 0")
    for rr in range(2):
        e("  v_add_f32_dpp v%d, v%d, v%d row_bcast:15 row_mask:0xa bank_mask:0xf" % (22 + rr, 22 + rr, 22 + rr))
    e("  s_nop 0")
    for rr in range(2):
        e("  v_add_f32_dpp v%d, v%d, v%d row_bcast:31 row_mask:0xc bank_mask:0xf" % (22 + rr, 22 + rr, 22 + rr))
    e("  v_cvt_pk_bf16_f32 v24, v22, v23")
    e("  v_lshlrev_b32 v22, 16, v24")
    e("  v_and_b32 v23, %s, v24" % S_M)
    for rr in range(2):
        e("  v_mul_f32 v%d, 0x%08x, v%d" % (22 + rr, f2u(-1.4426950408889634), 22 + rr))
    for rr in range(2):
        e("  v_exp_f32 v%d, v%d" % (22 + rr, 22 + rr))
    e("  s_nop 0")
    for rr in range(2):
        e("  v_add_f32 v%d, 1.0, v%d" % (22 + rr, 22 + rr))
    for rr in range(2):
        e("  v_rcp_f32 v%d, v%d" % (22 + rr, 22 + rr))
    e("  s_nop 0")
    e("  v_cvt_pk_bf16_f32 v24, v22, v23")
    e("  v_lshlrev_b32 v22, 16, v24")
    e("  v_and_b32 v23, %s, v24" % S_M)
    e("  v_sub_f32 v24, 1.0, v22")
    e("  v_sub_f32 v25, 1.0, v23")
    e("  v_cvt_pk_bf16_f32 v26, v22, v24")
    e("  v_cvt_pk_bf16_f32 v27, v23, v25")
    chunk_end()
    e("  s_lshl_b32 s8, s58, 2")
    e("  s_add_u32 s8, s8, 0x%x" % WS_G)
    e("  v_mov_b32 v21, s8")
    e("  s_mov_b32 exec_lo, 0")
    e("  s_mov_b32 exec_hi, 0x80000000")
    e("  global_store_dwordx2 v21, v[26:27], s[52:53] sc1")
    e("  s_mov_b64 exec, -1")
    e("L_nogate:")
    e("  v_lshrrev_b32 v41, 8, v0")
    e("  v_and_b32 v40, 255, v0")
    e("  v_mul_u32_u24 v42, 12288, v41")
    e("  v_lshlrev_b32 v43, 3, v40")
    e("  v_cmp_gt_u32 vcc, 16, v40")
    for ee in range(0, 8, 2):
        e("  v_add_u32 v44, %d, v43" % ee)
        e("  v_add_u32 v45, %d, v43" % (ee + 1))
        e("  v_cvt_f32_u32 v46, v44")
        e("  v_cvt_f32_u32 v47, v45")
        e("  v_cvt_pk_bf16_f32 v46, v46, v47")
        e("  v_and_b32 v47, %s, v46" % S_LO)
        e("  v_lshrrev_b32 v46, 16, v46")
        e("  v_subrev_u32 v47, 17024, v47")
        e("  v_subrev_u32 v46, 17024, v46")
        e("  v_cndmask_b32 v47, v47, v44, vcc")
        e("  v_cndmask_b32 v46, v46, v45, vcc")
        e("  v_lshl_add_u32 v%d, v47, 2, v42" % (100 + ee))
        e("  v_lshl_add_u32 v%d, v46, 2, v42" % (101 + ee))
    e("  v_mul_u32_u24 v44, %d, v41" % (2 * KRW))
    e("  v_lshl_add_u32 v44, v40, 4, v44")
    e("  v_add_u32 v44, %d, v44" % (L_K + 64))
    e("  s_waitcnt lgkmcnt(0)")
    e("  s_barrier")
    for ee in range(8):
        e("  ds_read2st64_b32 %s, v%d offset0:0 offset1:12" % (pair(48 + 4 * ee), 100 + ee))
        e("  ds_read2st64_b32 %s, v%d offset0:24 offset1:36" % (pair(50 + 4 * ee), 100 + ee))
    for p in range(4):
        e("  s_waitcnt lgkmcnt(%d)" % (12 - 4 * p))
        for h in range(2):
            b = 48 + 8 * p + 4 * h
            e("  v_pk_add_f32 %s, %s, %s" % (pair(b), pair(b), pair(b + 2)))
        for h in range(2):
            b = 48 + 8 * p + 4 * h
            e("  v_add_f32 v%d, v%d, v%d" % (b, b, b + 1))
        e("  v_cvt_pk_bf16_f32 v%d, v%d, v%d" % (84 + p, 48 + 8 * p, 52 + 8 * p))
    e("  ds_write_b128 v44, v[84:87]")
    e("  s_cmp_ge_u32 s3, 4")
    e("  s_cbranch_scc1 L_upost")

    e("  s_lshr_b32 s8, s3, 1")
    e("  s_add_u32 s8, s8, s6")
    e("  s_and_b32 s9, s3, 1")
    e("  s_lshl_b32 s8, s8, 12")
    e("  s_lshl_b32 s9, s9, 21")
    e("  s_add_u32 s9, s9, s8")
    e("  s_add_u32 s12, s52, s9")
    e("  s_addc_u32 s13, s53, 0")
    e("  s_and_b32 s13, s13, 0xffff")
    e("  s_mov_b32 s14, 4096")
    e("  s_mov_b32 s15, 0x00020000")
    e("  s_mul_i32 s8, s3, %d" % KRW)
    e("  s_add_u32 s8, s8, %d" % (L_K + 4))
    e("  v_lshlrev_b32 v192, 2, v2")
    e("  v_lshl_add_u32 v192, v3, 4, v192")
    e("  v_add_u32 v192, s8, v192")
    for sp in range(1, 8):
        e("  v_add_u32 v%d, %d, v192" % (192 + sp, 512 * sp))
    e("  s_mul_i32 s8, s3, %d" % RW)
    e("  s_add_u32 s8, s8, %d" % L_U)
    e("  v_and_b32 v28, 1, v2")
    e("  v_lshrrev_b32 v29, 1, v2")
    e("  v_sub_u32 v28, 1, v28")
    e("  v_mul_u32_u24 v28, %d, v28" % CPY)
    e("  v_lshlrev_b32 v29, 6, v29")
    e("  v_sub_u32 v28, v28, v29")
    e("  v_lshl_add_u32 v28, v3, 4, v28")
    e("  v_add_u32 v28, 448, v28")
    e("  v_add_u32 v201, s8, v28")
    e("  v_lshlrev_b32 v5, 4, v1")
    e("  v_add_u32 v6, 16, v5")
    e("  v_add_u32 v200, s8, v5")
    for r in range(4):
        e("  v_mov_b32 v%d, 0" % (28 + r))
    e("  v_cmp_gt_u32 vcc, 28, v1")
    e("  s_and_saveexec_b64 s[18:19], vcc")
    e("  ds_write_b128 v200, v[28:31] offset:%d" % 4096)
    e("  ds_write_b128 v200, v[28:31] offset:%d" % (4096 + CPY))
    e("  s_mov_b64 exec, s[18:19]")
    for r in range(160, 192):
        e("  v_mov_b32 v%d, 0" % r)
    e("  s_cmp_lg_u32 s3, 0")
    e("  s_cbranch_scc1 L_nopoll")
    poll("L_pollT", 242, 240)
    e("L_nopoll:")
    e("  s_waitcnt lgkmcnt(0)")
    e("  s_barrier")
    stamp(5)
    e("  s_lshl_b32 s8, s6, 1")
    e("  v_mov_b32 v7, s8")
    e("  global_load_dword v252, v7, s[32:33]")
    e("  global_load_dword v253, v7, s[44:45]")
    for k in range(4):
        e("  buffer_load_dwordx4 %s, v5, s[12:15], 0 offen offset:%d sc1" % (quad(8 + 4 * k), 1024 * k))
    for k in range(4):
        e("  buffer_load_dword v%d, v6, s[12:15], 0 offen offset:%d sc1" % (24 + k, 1024 * k))
    def kreg(st, sp):
        return 32 + 64 * st + 4 * sp
    def ureg(st, bp):
        return 32 + 64 * st + 32 + 4 * bp
    def kloads(rc):
        st = rc & 1
        ins = []
        for sp in range(8):
            ins.append("  ds_read2_b32 %s, v%d offset0:%d offset1:%d" % (pair(kreg(st, sp)), 192 + sp, 16 * rc, 16 * rc + 1))
            ins.append("  ds_read2_b32 %s, v%d offset0:%d offset1:%d" % (pair(kreg(st, sp) + 2), 192 + sp, 16 * rc + 2, 16 * rc + 3))
        return ins
    def uloads(rc):
        st = rc & 1
        ins = []
        for bp in range(8):
            beta = 8 * bp - rc
            ins.append("  ds_read_b128 %s, v201 offset:%d" % (quad(ureg(st, bp)), 3584 - 64 * beta))
        return ins
    for x in kloads(0):
        e(x)
    for k in range(4):
        b = 8 + 4 * k
        e("  s_waitcnt vmcnt(%d)" % (3 - k))
        e("  ds_write_b128 v200, %s offset:%d" % (quad(b), 1024 * k))
        e("  v_alignbit_b32 v28, v%d, v%d, 16" % (b + 1, b))
        e("  v_alignbit_b32 v29, v%d, v%d, 16" % (b + 2, b + 1))
        e("  v_alignbit_b32 v30, v%d, v%d, 16" % (b + 3, b + 2))
        e("  v_alignbit_b32 v31, v%d, v%d, 16" % (24 + k, b + 3))
        e("  ds_write_b128 v200, v[28:31] offset:%d" % (1024 * k + CPY))
        e("  s_nop 1")
    stamp(6)
    for x in uloads(0):
        e(x)
    for rc in range(8):
        st = rc & 1
        e("  s_waitcnt lgkmcnt(0)")
        mf = []
        for sp in range(8):
            for bp in range(8 - sp):
                t = sp + bp
                mf.append("  v_mfma_f32_16x16x32_bf16 %s, %s, %s, %s" % (quad(160 + 4 * t), quad(ureg(st, bp)), quad(kreg(st, sp)), quad(160 + 4 * t)))
        nl = []
        if rc < 7:
            kl, ul = kloads(rc + 1), uloads(rc + 1)
            for i in range(8):
                nl += [kl[2 * i], kl[2 * i + 1], ul[i]]
        li = 0
        for i, x in enumerate(mf):
            e(x)
            if li < len(nl):
                e(nl[li]); li += 1
        assert li == len(nl)
    e("  s_lshl_b32 s8, s3, 12")
    e("  s_add_u32 s8, s8, %d" % L_Y)
    e("  v_lshlrev_b32 v5, 7, v3")
    e("  v_lshl_add_u32 v5, v2, 2, v5")
    e("  v_add_u32 v5, s8, v5")
    e("  s_nop 7")
    stamp(7)
    for t in range(8):
        a = 160 + 4 * t
        e("  v_cvt_pk_bf16_f32 v%d, v%d, v%d" % (8 + 2 * t, a, a + 1))
        e("  v_cvt_pk_bf16_f32 v%d, v%d, v%d" % (9 + 2 * t, a + 2, a + 3))
        e("  ds_write_b32 v5, v%d offset:%d" % (8 + 2 * t, 512 * t))
        e("  ds_write_b32 v5, v%d offset:%d" % (9 + 2 * t, 512 * t + 64))
    e("  s_branch L_combine")

    e("L_upost:")
    e("  s_waitcnt vmcnt(0) lgkmcnt(0)")
    e("  s_barrier")
    stamp(5)
    e("  s_lshl_b32 s8, s6, 1")
    e("  v_mov_b32 v7, s8")
    e("  global_load_dword v252, v7, s[32:33]")
    e("  global_load_dword v253, v7, s[44:45]")
    e("  s_cmp_lg_u32 s3, 4")
    e("  s_cbranch_scc1 L_combine")
    e("  v_mov_b32 v49, 1")
    e("  s_lshr_b32 s8, s4, 1")
    e("  s_lshl_b32 s8, s8, 6")
    e("  s_and_b32 s9, s4, 1")
    e("  s_lshl_b32 s9, s9, 4")
    e("  s_add_u32 s8, s8, s9")
    e("  s_add_u32 s8, s8, 4")
    e("  v_mov_b32 v50, s8")
    e("  s_mov_b64 exec, 1")
    e("  global_atomic_add v51, v50, v49, s[50:51] sc0 sc1")
    e("  s_waitcnt vmcnt(0)")
    e("  v_and_b32 v51, 31, v51")
    e("  v_cmp_eq_u32 vcc, 31, v51")
    e("  s_and_b64 exec, exec, vcc")
    e("  s_cbranch_execz L_garr_done")
    e("  v_mov_b32 v50, 32")
    e("  global_atomic_add v51, v50, v49, s[50:51] sc0 sc1")
    e("  s_waitcnt vmcnt(0)")
    e("  v_and_b32 v51, 7, v51")
    e("  v_cmp_eq_u32 vcc, 7, v51")
    e("  s_and_b64 exec, exec, vcc")
    e("  s_cbranch_execz L_garr_done")
    e("  s_mov_b64 exec, -1")
    e("  v_lshlrev_b32 v52, 7, v1")
    e("  v_add_u32 v52, 0x%x, v52" % (WS_MB + 4))
    for c in range(4):
        e("  global_atomic_add v52, v49, s[52:53] sc1")
        if c < 3:
            e("  v_add_u32 v52, 8192, v52")
    e("L_garr_done:")
    e("  s_mov_b64 exec, -1")
    e("  v_mov_b32 v10, %d" % (L_CNT + 8))
    e("  ds_read_b32 v11, v10")
    e("  s_lshl_b32 s8, s2, 7")
    e("  s_add_u32 s8, s8, 0x%x" % (WS_MB + 4))
    e("  v_mov_b32 v10, s8")
    e("  s_waitcnt lgkmcnt(0)")
    poll("L_pollG", 10, 11)
    e("  v_lshlrev_b32 v40, 4, v1")
    e("  v_add_u32 v41, 0x%x, v40" % WS_G)
    e("  v_add_u32 v42, 4096, v41")
    for c in range(8):
        e("  global_load_dwordx4 %s, v%d, s[52:53] offset:%d sc1" % (quad(48 + 4 * c), 41 + (c >> 2), 1024 * (c & 3)))
    for c in range(8):
        e("  s_waitcnt vmcnt(%d)" % (7 - c))
        e("  ds_write_b128 v40, %s offset:%d" % (quad(48 + 4 * c), L_G + 1024 * c))
    stamp(6)
    stamp(7)

    e("L_combine:")
    e("  s_lshl_b32 s8, s6, 1")
    e("  v_lshlrev_b32 v5, 3, v0")
    e("  v_sub_u32 v6, %d, v5" % (L_U + 4088))
    e("  v_lshlrev_b32 v4, 4, v0")
    e("  v_lshlrev_b32 v7, 12, v0")
    e("  v_add_u32 v7, s8, v7")
    e("  s_waitcnt vmcnt(0)")
    e("  v_and_b32 v64, %s, v252" % S_LO)
    e("  v_lshlrev_b32 v65, 16, v252")
    e("  v_lshrrev_b32 v66, 16, v252")
    e("  v_and_b32 v67, %s, v252" % S_M)
    e("  v_and_b32 v68, %s, v253" % S_LO)
    e("  v_lshlrev_b32 v69, 16, v253")
    e("  v_lshrrev_b32 v70, 16, v253")
    e("  v_and_b32 v71, %s, v253" % S_M)
    e("  s_mov_b32 s12, 0x3f80")
    e("  s_mov_b32 s13, 0x3f800000")
    e("  s_waitcnt lgkmcnt(0)")
    e("  s_barrier")
    stamp(8)
    for w in range(4):
        e("  ds_read_b64 %s, v5 offset:%d" % (pair(32 + 2 * w), L_Y + 4096 * w))
    for w in range(4):
        e("  ds_read_b64 %s, v6 offset:%d" % (pair(40 + 2 * w), RW * w))
    e("  ds_read_b128 v[48:51], v4 offset:%d" % L_G)
    e("  s_waitcnt lgkmcnt(0)")
    E = [(k, c) for k in range(4) for c in range(2)]
    T1, T2, YA, YB, PK, UM, GS = 72, 80, 88, 96, 104, 112, 120
    sel = lambda hi: ("s13" if hi else "s12")
    for (k, c) in E:
        i = 2 * k + c; ee = 3 - k
        dot2(T1 + i, v(40 + 4 * c + (ee >> 1)), v(64 + 2 * c + (ee & 1)))
        dot2(T2 + i, v(42 + 4 * c + (ee >> 1)), v(68 + 2 * c + (ee & 1)))
        dot2(YA + i, v(32 + 4 * c + (k >> 1)), sel(k & 1))
        dot2(YB + i, v(34 + 4 * c + (k >> 1)), sel(k & 1))
        if ee & 1:
            e("  v_and_b32 v%d, %s, v%d" % (UM + i, S_M, 40 + 4 * c + (ee >> 1)))
        else:
            e("  v_lshlrev_b32 v%d, 16, v%d" % (UM + i, 40 + 4 * c + (ee >> 1)))
    for (k, c) in E:
        i = 2 * k + c
        e("  v_cvt_pk_bf16_f32 v%d, v%d, v%d" % (PK + i, T1 + i, T2 + i))
    for (k, c) in E:
        i = 2 * k + c
        dot2(T1 + i, v(PK + i), "s12", v(YA + i))
        dot2(T2 + i, v(PK + i), "s13", v(YB + i))
    for (k, c) in E:
        i = 2 * k + c
        e("  v_cvt_pk_bf16_f32 v%d, v%d, v%d" % (PK + i, T1 + i, T2 + i))
    for k in range(4):
        e("  v_and_b32 v%d, %s, v%d" % (GS + k, S_LO, 48 + k))
        e("  v_and_b32 v%d, %s, v%d" % (GS + 4 + k, S_M, 48 + k))
    for (k, c) in E:
        i = 2 * k + c
        dot2(T1 + i, v(PK + i), v(GS + k))
        dot2(T2 + i, v(PK + i), v(UM + i))
    for (k, c) in E:
        i = 2 * k + c
        e("  v_cvt_pk_bf16_f32 v%d, v%d, v%d" % (PK + i, T1 + i, T2 + i))
    for (k, c) in E:
        i = 2 * k + c
        dot2(T2 + i, v(PK + i), v(GS + 4 + k))
    for (k, c) in E:
        i = 2 * k + c
        e("  v_cvt_pk_bf16_f32 v%d, v%d, v%d" % (PK + i, T1 + i, T2 + i))
    for (k, c) in E:
        i = 2 * k + c
        dot2(T1 + i, v(PK + i), S_ONES)
    e("  s_nop 1")
    for k in range(4):
        e("  v_cvt_pk_bf16_f32 v%d, v%d, v%d" % (T2 + k, T1 + 2 * k, T1 + 2 * k + 1))
        e("  global_store_dword v7, v%d, s[48:49] offset:%d" % (T2 + k, 1024 * k))
    stamp(9)
    stamp_flush(10)
    e("L_end:")
    e("  s_endpgm")

def main():
    e(HEADER.rstrip("\n"))
    e("; @launch grid=(256,1,1) block=(512,1,1) lds=%d" % LDS_TOTAL)
    e('.amdgcn_target "amdgcn-amd-amdhsa--gfx950"')
    e(".text")
    gen()
    e('.section .rodata,"a"')
    e(".p2align 6")
    e(".amdhsa_kernel %s" % KN)
    e("  .amdhsa_next_free_vgpr 256")
    e("  .amdhsa_next_free_sgpr 102")
    e("  .amdhsa_accum_offset 256")
    e("  .amdhsa_group_segment_fixed_size 0")
    e("  .amdhsa_kernarg_size 152")
    e("  .amdhsa_user_sgpr_count 2")
    e("  .amdhsa_user_sgpr_kernarg_segment_ptr 1")
    e("  .amdhsa_system_sgpr_workgroup_id_x 1")
    e(".end_amdhsa_kernel")
    args = [a for a in sys.argv[1:] if not a.startswith("--")]
    open(args[0] if args else OUT, "w").write("\n".join(L) + "\n")

main()
```

```python
import struct, sys, math

NAME = "gated_mix__ssm_conv_s4__ssm_conv_h3__prompt"
OUT = "cdna_kernels/%s.s" % NAME
KN = NAME + "_kernel"

def f2u(x):
    return struct.unpack("<I", struct.pack("<f", x))[0]

L = []
def e(s=""):
    L.append(s)

STAMP = "--stamp" in sys.argv
NOWARM = "--nowarm" in sys.argv
NOPF = "--nopf" in sys.argv
TA = 4
for a in sys.argv:
    if a.startswith("--ta="):
        TA = int(a[5:])
NPF = 2
WS_UT, WS_KVT, WS_G, WS_MB, WS_ST = 0x000000, 0x200000, 0x600000, 0x700000, 0x800000

def stamp(i):
    if STAMP:
        e("  s_memrealtime s[%d:%d]" % (60 + 2 * i, 61 + 2 * i))
        e("  s_memtime s[%d:%d]" % (80 + 2 * i, 81 + 2 * i))
def stamp_flush(n):
    if not STAMP:
        return
    e("  s_waitcnt vmcnt(0) lgkmcnt(0)")
    e("  s_mov_b64 exec, 1")
    e("  v_lshrrev_b32 v124, 6, v0")
    e("  v_lshlrev_b32 v124, 8, v124")
    e("  s_lshl_b32 s100, s2, 11")
    e("  s_add_u32 s100, s100, 0x%x" % WS_ST)
    e("  v_add_u32 v124, s100, v124")
    for i in range(n):
        e("  v_mov_b32 v126, s%d" % (60 + 2 * i))
        e("  v_mov_b32 v127, s%d" % (61 + 2 * i))
        e("  global_store_dwordx2 v124, v[126:127], s[52:53] offset:%d" % (8 * i))
        e("  s_nop 1")
        e("  v_mov_b32 v126, s%d" % (80 + 2 * i))
        e("  v_mov_b32 v127, s%d" % (81 + 2 * i))
        e("  global_store_dwordx2 v124, v[126:127], s[52:53] offset:%d" % (128 + 8 * i))
        e("  s_nop 1")

HEADER = open("cdna_kernels/%s.s.ref" % NAME).read().split("; Override launch")[0]

def pair(r):
    return "v[%d:%d]" % (r, r + 1)
def quad(r):
    return "v[%d:%d]" % (r, r + 3)
def v(r):
    return "v%d" % r

S_M, S_LO, S_ONES, S_P0, S_P1 = "s7", "s54", "s55", "s56", "s57"

CPY = 4640
RW = 9216
KRW = 4224
L_TAB = 0
L_CNT = 24576
L_PT = 24704
L_G = L_PT + 4096
L_Y = L_G + 8192
L_U = L_Y + 4 * 4096
L_K = L_U + 4 * RW
LDS_TOTAL = L_K + 4 * KRW
L_TT = L_G
TTW = 2560
SPIN_MAX = 1 << 18

def dot2(d, a, b, c="0"):
    e("  v_dot2_f32_bf16 v%d, %s, %s, %s" % (d, a, b, c))

def poll(label, off_reg, want_reg, data=(9, 14, 15, 16)):
    e("  s_mov_b32 s58, 0")
    e("  s_mov_b64 exec, 1")
    for d in data[:3]:
        e("  global_load_dword v%d, v%d, s[52:53] sc1" % (d, off_reg))
        e("  s_sleep 1")
    e("%s:" % label)
    for i in range(4):
        e("  global_load_dword v%d, v%d, s[52:53] sc1" % (data[(i + 3) % 4], off_reg))
        e("  s_waitcnt vmcnt(3)")
        e("  v_cmp_ne_u32 vcc, v%d, v%d" % (want_reg, data[i]))
        e("  s_add_u32 s58, s58, 1")
        e("  s_nop 0")
        e("  s_cbranch_vccz %s_done" % label)
        e("  s_sleep 1")
    e("  s_cmp_lt_u32 s58, %d" % SPIN_MAX)
    e("  s_cbranch_scc1 %s" % label)
    e("%s_done:" % label)
    e("  s_waitcnt vmcnt(0)")
    e("  s_mov_b64 exec, -1")

def chunk_end():
    e("  s_cbranch_execz L_warm_ret")

def grp_off(dst, extra):
    e("  s_lshr_b32 s8, s4, 1")
    e("  s_lshl_b32 s8, s8, 6")
    e("  s_and_b32 s9, s4, 1")
    e("  s_lshl_b32 s9, s9, 4")
    e("  s_add_u32 s8, s8, s9")
    if extra:
        e("  s_add_u32 s8, s8, %d" % extra)
    e("  v_mov_b32 v%d, s8" % dst)

def combine(nl, tidreg, lbase):
    sh = {4: 3, 2: 2}[nl]
    e("  v_lshlrev_b32 v5, %d, v%d" % (sh, tidreg))
    e("  v_sub_u32 v6, %d, v5" % (L_U + 4096 - 2 * lbase - 2 * nl))
    e("  v_lshlrev_b32 v4, %d, v%d" % (sh + 1, tidreg))
    e("  v_lshlrev_b32 v7, %d, v%d" % (sh + 9, tidreg))
    e("  s_lshl_b32 s8, s6, 1")
    e("  s_add_u32 s8, s8, %d" % (lbase * 1024))
    e("  v_add_u32 v7, s8, v7")
    rd = "ds_read_b64" if nl == 4 else "ds_read_b32"
    nr = nl // 2
    def regs(b):
        return pair(b) if nl == 4 else v(b)
    for w in range(4):
        e("  %s %s, v5 offset:%d" % (rd, regs(32 + 2 * w), L_Y + 4096 * w + 2 * lbase))
    for w in range(4):
        e("  %s %s, v6 offset:%d" % (rd, regs(40 + 2 * w), RW * w))
    if nl == 4:
        e("  ds_read_b128 v[48:51], v4 offset:%d" % (L_G + 4 * lbase))
    else:
        e("  ds_read_b64 v[48:49], v4 offset:%d" % (L_G + 4 * lbase))
    e("  s_waitcnt lgkmcnt(0)")
    E = [(k, c) for k in range(nl) for c in range(2)]
    T1, T2, YA, YB, PK, UM, GS = 72, 80, 88, 96, 104, 112, 120
    sel = lambda hi: ("s13" if hi else "s12")
    pad = (lambda: e("  s_nop 2")) if nl == 2 else (lambda: None)
    for (k, c) in E:
        i = 2 * k + c; ee = nl - 1 - k
        dot2(T1 + i, v(40 + 4 * c + (ee >> 1)), v(64 + 2 * c + (ee & 1)))
        dot2(T2 + i, v(42 + 4 * c + (ee >> 1)), v(68 + 2 * c + (ee & 1)))
        dot2(YA + i, v(32 + 4 * c + (k >> 1)), sel(k & 1))
        dot2(YB + i, v(34 + 4 * c + (k >> 1)), sel(k & 1))
        if ee & 1:
            e("  v_and_b32 v%d, %s, v%d" % (UM + i, S_M, 40 + 4 * c + (ee >> 1)))
        else:
            e("  v_lshlrev_b32 v%d, 16, v%d" % (UM + i, 40 + 4 * c + (ee >> 1)))
    pad()
    for (k, c) in E:
        i = 2 * k + c
        e("  v_cvt_pk_bf16_f32 v%d, v%d, v%d" % (PK + i, T1 + i, T2 + i))
    for (k, c) in E:
        i = 2 * k + c
        dot2(T1 + i, v(PK + i), "s12", v(YA + i))
        dot2(T2 + i, v(PK + i), "s13", v(YB + i))
    for k in range(nl):
        e("  v_and_b32 v%d, %s, v%d" % (GS + k, S_LO, 48 + k))
        e("  v_and_b32 v%d, %s, v%d" % (GS + 4 + k, S_M, 48 + k))
    for (k, c) in E:
        i = 2 * k + c
        e("  v_cvt_pk_bf16_f32 v%d, v%d, v%d" % (PK + i, T1 + i, T2 + i))
    for (k, c) in E:
        i = 2 * k + c
        dot2(T1 + i, v(PK + i), v(GS + k))
        dot2(T2 + i, v(PK + i), v(UM + i))
    pad()
    for (k, c) in E:
        i = 2 * k + c
        e("  v_cvt_pk_bf16_f32 v%d, v%d, v%d" % (PK + i, T1 + i, T2 + i))
    for (k, c) in E:
        i = 2 * k + c
        dot2(T2 + i, v(PK + i), v(GS + 4 + k))
    pad()
    for (k, c) in E:
        i = 2 * k + c
        e("  v_cvt_pk_bf16_f32 v%d, v%d, v%d" % (PK + i, T1 + i, T2 + i))
    for (k, c) in E:
        i = 2 * k + c
        dot2(T1 + i, v(PK + i), S_ONES)
    e("  s_nop 2")
    for k in range(nl):
        e("  v_cvt_pk_bf16_f32 v%d, v%d, v%d" % (T2 + k, T1 + 2 * k, T1 + 2 * k + 1))
        e("  global_store_dword v7, v%d, s[48:49] offset:%d" % (T2 + k, 1024 * k))

def dsel():
    e("  v_and_b32 v64, %s, v252" % S_LO)
    e("  v_lshlrev_b32 v65, 16, v252")
    e("  v_lshrrev_b32 v66, 16, v252")
    e("  v_and_b32 v67, %s, v252" % S_M)
    e("  v_and_b32 v68, %s, v253" % S_LO)
    e("  v_lshlrev_b32 v69, 16, v253")
    e("  v_lshrrev_b32 v70, 16, v253")
    e("  v_and_b32 v71, %s, v253" % S_M)
    e("  s_mov_b32 s12, 0x3f80")
    e("  s_mov_b32 s13, 0x3f800000")

def gate_block():
    e("L_uc0:")
    for dd in range(4):
        e("  v_and_b32 v%d, %s, v%d" % (60 + 2 * dd, S_LO, 132 + dd))
        e("  v_and_b32 v%d, %s, v%d" % (61 + 2 * dd, S_M, 132 + dd))
    for rr in range(2):
        for dd in range(4):
            dot2(136 + 8 * rr + 2 * dd, v(124 + 4 * rr + dd), v(60 + 2 * dd))
            dot2(137 + 8 * rr + 2 * dd, v(124 + 4 * rr + dd), v(61 + 2 * dd))
    for rr in range(2):
        for dd in range(4):
            e("  v_cvt_pk_bf16_f32 v%d, v%d, v%d" % (152 + 4 * rr + dd, 136 + 8 * rr + 2 * dd, 137 + 8 * rr + 2 * dd))
    for dd in range(4):
        for rr in range(2):
            dot2(54 + rr, v(152 + 4 * rr + dd), S_ONES, "0" if dd == 0 else v(54 + rr))
    e("  s_nop 2")
    for sh in (1, 2, 4, 8):
        for rr in range(2):
            e("  v_add_f32_dpp v%d, v%d, v%d row_shr:%d row_mask:0xf bank_mask:0xf bound_ctrl:0" % (54 + rr, 54 + rr, 54 + rr, sh))
        e("  s_nop 0")
    for rr in range(2):
        e("  v_add_f32_dpp v%d, v%d, v%d row_bcast:15 row_mask:0xa bank_mask:0xf" % (54 + rr, 54 + rr, 54 + rr))
    e("  s_nop 0")
    for rr in range(2):
        e("  v_add_f32_dpp v%d, v%d, v%d row_bcast:31 row_mask:0xc bank_mask:0xf" % (54 + rr, 54 + rr, 54 + rr))
    e("  v_cvt_pk_bf16_f32 v56, v54, v55")
    e("  v_lshlrev_b32 v54, 16, v56")
    e("  v_and_b32 v55, %s, v56" % S_M)
    for rr in range(2):
        e("  v_mul_f32 v%d, 0x%08x, v%d" % (54 + rr, f2u(-1.4426950408889634), 54 + rr))
    for rr in range(2):
        e("  v_exp_f32 v%d, v%d" % (54 + rr, 54 + rr))
    e("  s_nop 0")
    for rr in range(2):
        e("  v_add_f32 v%d, 1.0, v%d" % (54 + rr, 54 + rr))
    for rr in range(2):
        e("  v_rcp_f32 v%d, v%d" % (54 + rr, 54 + rr))
    e("  s_nop 0")
    e("  v_cvt_pk_bf16_f32 v56, v54, v55")
    e("  v_lshlrev_b32 v54, 16, v56")
    e("  v_and_b32 v55, %s, v56" % S_M)
    e("  v_sub_f32 v56, 1.0, v54")
    e("  v_sub_f32 v57, 1.0, v55")
    e("  v_cvt_pk_bf16_f32 v58, v54, v56")
    e("  v_cvt_pk_bf16_f32 v59, v55, v57")
    chunk_end()
    e("  s_lshl_b32 s8, s35, 2")
    e("  s_add_u32 s8, s8, 0x%x" % WS_G)
    e("  v_mov_b32 v53, s8")
    e("  s_mov_b32 exec_lo, 0")
    e("  s_mov_b32 exec_hi, 0x80000000")
    e("  global_store_dwordx2 v53, v[58:59], s[52:53] sc1")
    e("  s_mov_b64 exec, -1")

def gen():
    e(".globl %s" % KN)
    e(".p2align 8")
    e(".type %s,@function" % KN)
    e("%s:" % KN)
    e("  s_cmp_ge_u32 s2, 256")
    e("  s_cbranch_scc1 L_end")
    stamp(0)
    e("  s_load_dwordx16 s[16:31], s[0:1], 0")
    e("  s_load_dwordx16 s[32:47], s[0:1], 64")
    e("  s_load_dwordx4 s[48:51], s[0:1], 128")
    e("  s_load_dwordx2 s[52:53], s[0:1], 144")
    if not NOPF:
        e("  s_getpc_b64 s[8:9]")
        e("L_pc:")
        e("  v_lshlrev_b32 v4, 4, v0")
        for c in range(NPF):
            e("  global_load_dwordx4 v[%d:%d], v4, s[8:9]" % (100 + 4 * c, 103 + 4 * c))
            if c < NPF - 1:
                e("  v_add_u32 v4, 8192, v4")
                e("  v_min_u32 v4, L_end-L_pc-16, v4")
    e("  v_lshrrev_b32 v4, 6, v0")
    e("  v_and_b32 v1, 63, v0")
    e("  v_readfirstlane_b32 s3, v4")
    e("  v_and_b32 v2, 15, v1")
    e("  v_lshrrev_b32 v3, 4, v1")
    e("  s_and_b32 s4, s2, 7")
    e("  s_lshr_b32 s5, s2, 3")
    e("  s_and_b32 s8, s3, 2")
    e("  s_and_b32 s9, s3, 1")
    e("  s_lshl_b32 s10, s5, 6")
    e("  s_lshl_b32 s8, s8, 4")
    e("  s_add_u32 s10, s10, s8")
    e("  s_lshl_b32 s11, s4, 6")
    e("  s_lshl_b32 s9, s9, 5")
    e("  s_add_u32 s11, s11, s9")
    e("  s_lshl_b32 s12, s10, 10")
    e("  s_lshl_b32 s13, s11, 1")
    e("  s_add_u32 s12, s12, s13")
    e("  v_lshlrev_b32 v5, 13, v3")
    e("  v_lshl_add_u32 v5, v2, 2, v5")
    e("  v_add_u32 v5, s12, v5")
    e("  v_add_u32 v6, 4096, v5")
    e("  s_lshl_b32 s6, s4, 6")
    e("  s_lshl_b32 s8, s5, 1")
    e("  s_add_u32 s6, s6, s8")
    e("  s_lshr_b32 s8, s3, 2")
    e("  s_add_u32 s8, s8, s6")
    e("  s_and_b32 s9, s3, 3")
    e("  s_lshl_b32 s12, s8, 8")
    e("  s_lshl_b32 s13, s9, 6")
    e("  s_add_u32 s12, s12, s13")
    e("  v_and_b32 v8, 31, v1")
    e("  v_lshlrev_b32 v8, 1, v8")
    e("  v_add_u32 v8, s12, v8")
    e("  s_lshl_b32 s13, s8, 1")
    e("  v_mov_b32 v9, s13")
    e("  v_subrev_u32 v7, 3072, v5")
    e("  s_lshl_b32 s13, s11, 3")
    e("  v_lshlrev_b32 v4, 4, v2")
    e("  v_add_u32 v4, s13, v4")
    e("  s_waitcnt lgkmcnt(0)")
    e("  global_load_ushort v238, v9, s[30:31]")
    for k in range(6):
        e("  global_load_ushort v%d, v8, s[%d:%d]" % (232 + k, 18 + 2 * k, 19 + 2 * k))
    e("  s_cmp_ge_u32 s3, 4")
    e("  s_cbranch_scc1 L_uload")
    e("  s_mov_b32 s12, s36")
    e("  s_and_b32 s13, s37, 0xffff")
    e("  s_mov_b32 s14, 0x200000")
    e("  s_mov_b32 s15, 0x00020000")
    e("  global_load_dwordx4 v[30:33], v4, s[40:41]")
    for h in range(3):
        e("  buffer_load_dword v%d, v7, s[12:15], 0 offen offset:%d" % (10 + h, 1024 * h))
    for r in range(8):
        e("  buffer_load_dword v%d, v%d, s[12:15], 0 offen offset:%d" % (13 + r, 5 + (r >> 2), 1024 * (r & 3)))
    for r in range(8):
        e("  global_load_dword v%d, v%d, s[38:39] offset:%d" % (21 + r, 5 + (r >> 2), 1024 * (r & 3)))
    e("  s_lshl_b32 s8, s2, 7")
    e("  s_add_u32 s8, s8, 0x%x" % WS_MB)
    e("  v_mov_b32 v242, s8")
    e("  v_mov_b32 v243, 0")
    e("  global_load_dwordx2 v[240:241], v242, s[52:53] sc1")
    e("  s_mul_i32 s8, s3, %d" % KRW)
    e("  s_add_u32 s8, s8, %d" % (L_K + 4))
    e("  v_lshlrev_b32 v192, 2, v2")
    e("  v_lshl_add_u32 v192, v3, 4, v192")
    e("  v_add_u32 v192, s8, v192")
    for sp in range(1, 8):
        e("  v_add_u32 v%d, %d, v192" % (192 + sp, 512 * sp))
    e("  s_mul_i32 s8, s3, %d" % RW)
    e("  s_add_u32 s8, s8, %d" % L_U)
    e("  v_and_b32 v42, 1, v2")
    e("  v_lshrrev_b32 v43, 1, v2")
    e("  v_sub_u32 v42, 1, v42")
    e("  v_mul_u32_u24 v42, %d, v42" % CPY)
    e("  v_lshlrev_b32 v43, 6, v43")
    e("  v_sub_u32 v42, v42, v43")
    e("  v_lshl_add_u32 v42, v3, 4, v42")
    e("  v_add_u32 v42, 448, v42")
    e("  v_add_u32 v201, s8, v42")
    e("  v_lshlrev_b32 v202, 4, v1")
    e("  v_add_u32 v200, s8, v202")
    for r in range(160, 192):
        e("  v_mov_b32 v%d, 0" % r)
    e("  v_cmp_gt_u32 vcc, 28, v1")
    e("  s_and_saveexec_b64 s[18:19], vcc")
    e("  ds_write_b128 v200, v[160:163] offset:%d" % 4096)
    e("  ds_write_b128 v200, v[160:163] offset:%d" % (4096 + CPY))
    e("  s_mov_b64 exec, s[18:19]")
    e("  s_branch L_common")
    e("L_uload:")
    for r in range(8):
        e("  global_load_dword v%d, v%d, s[16:17] offset:%d" % (10 + r, 5 + (r >> 2), 1024 * (r & 3)))
    e("  s_lshl_b32 s8, s2, 3")
    e("  s_lshl_b32 s12, s9, 1")
    e("  s_add_u32 s35, s8, s12")
    e("  s_lshl_b32 s8, s35, 10")
    e("  v_lshlrev_b32 v241, 4, v1")
    e("  v_add_u32 v243, s8, v241")
    e("  s_lshr_b32 s8, s9, 1")
    e("  s_add_u32 s8, s8, s6")
    e("  s_lshl_b32 s8, s8, 12")
    e("  s_and_b32 s12, s9, 1")
    e("  s_lshl_b32 s12, s12, 11")
    e("  s_add_u32 s8, s8, s12")
    e("  v_add_u32 v242, s8, v241")
    for r in range(4):
        e("  v_mov_b32 v%d, 0" % (44 + r))
    e("  v_mov_b32 v42, %d" % L_CNT)
    e("  ds_write_b128 v42, v[44:47]")
    e("  s_mul_i32 s12, s9, %d" % KRW)
    e("  s_add_u32 s12, s12, %d" % L_K)
    e("  v_add_u32 v42, s12, v241")
    e("  s_mov_b64 exec, 0xf")
    e("  ds_write_b128 v42, v[44:47]")
    e("  s_mov_b64 exec, -1")
    e("  s_or_b32 s12, s9, 1")
    e("  s_mul_i32 s12, s12, %d" % KRW)
    e("  s_and_b32 s13, s9, 1")
    e("  s_lshl_b32 s13, s13, 11")
    e("  s_add_u32 s12, s12, s13")
    e("  s_add_u32 s12, s12, %d" % (L_K + 64))
    e("  v_add_u32 v240, s12, v241")
    e("L_common:")
    e("  s_bfe_u32 s8, s3, 0x10001")
    e("  s_add_u32 s8, s8, s6")
    e("  s_and_b32 s9, s3, 1")
    e("  s_lshl_b32 s8, s8, 12")
    e("  s_lshl_b32 s9, s9, 21")
    e("  s_add_u32 s9, s9, s8")
    e("  s_add_u32 s36, s52, s9")
    e("  s_addc_u32 s37, s53, 0")
    e("  s_and_b32 s37, s37, 0xffff")
    e("  s_mov_b32 s38, 4096")
    e("  s_mov_b32 s39, 0x00020000")
    e("  v_lshlrev_b32 v202, 4, v1")
    e("  v_add_u32 v203, 16, v202")
    e("  s_mov_b32 %s, 0xffff0000" % S_M)
    e("  s_mov_b32 %s, 0xffff" % S_LO)
    e("  s_mov_b32 %s, 0x3f803f80" % S_ONES)
    e("  s_mov_b32 %s, 0x05040100" % S_P0)
    e("  s_mov_b32 %s, 0x07060302" % S_P1)
    e("  s_mul_i32 s8, s3, %d" % TTW)
    e("  s_add_u32 s8, s8, %d" % L_TT)
    e("  v_mul_u32_u24 v4, 160, v2")
    e("  v_lshlrev_b32 v42, 4, v3")
    e("  v_sub_u32 v4, v4, v42")
    e("  v_add3_u32 v4, v4, s8, 48")
    e("  v_lshrrev_b32 v42, 2, v1")
    e("  v_and_b32 v43, 3, v1")
    e("  v_mul_u32_u24 v5, 80, v42")
    e("  v_lshl_add_u32 v5, v43, 4, v5")
    e("  v_add_u32 v5, s8, v5")
    e("  s_lshl_b32 s8, s11, 12")
    e("  s_sub_u32 s9, 2016, s10")
    e("  s_lshl_b32 s9, s9, 1")
    e("  s_add_u32 s8, s8, s9")
    e("  s_cmp_lt_u32 s3, 4")
    e("  s_cselect_b32 s9, 0x%x, 0" % WS_KVT)
    e("  s_add_u32 s8, s8, s9")
    e("  v_lshlrev_b32 v42, 12, v42")
    e("  v_lshl_add_u32 v42, v43, 4, v42")
    e("  v_add_u32 v6, s8, v42")
    e("  v_add_u32 v7, 0x10000, v6")
    e("  v_mov_b32 v217, %d" % L_PT)
    e("  s_waitcnt lgkmcnt(0)")
    e("  s_barrier")
    if not NOWARM:
        e("  s_mov_b64 exec, 0")
        for wv, lab in enumerate(["L_kv0", "L_kv1", "L_kv2", "L_kv3", "L_uc0", "L_kb0", "L_kb2", "L_kb2"]):
            e("  s_cmp_eq_u32 s3, %d" % wv)
            e("  s_cbranch_scc1 %s" % lab)
    e("L_warm_ret:")
    e("  s_mov_b64 exec, -1")
    for r in range(220, 232):
        e("  v_mov_b32 v%d, 0" % r)
    e("  v_lshrrev_b32 v42, 3, v2")
    e("  v_and_b32 v43, 7, v2")
    e("  v_lshl_add_u32 v42, v42, 7, v43")
    e("  v_cvt_f32_u32 v208, v42")
    e("  v_lshrrev_b32 v42, 2, v2")
    e("  v_and_b32 v43, 3, v2")
    e("  v_lshlrev_b32 v43, 1, v43")
    e("  v_lshl_add_u32 v42, v42, 7, v43")
    e("  v_add_u32 v42, 256, v42")
    e("  v_lshrrev_b32 v44, 1, v2")
    e("  v_and_b32 v43, 1, v2")
    e("  v_lshlrev_b32 v43, 2, v43")
    e("  v_cmp_gt_u32 vcc, 8, v2")
    e("  v_lshl_add_u32 v44, v44, 7, v43")
    e("  v_lshlrev_b32 v45, 7, v2")
    e("  v_cndmask_b32 v42, v44, v42, vcc")
    e("  v_cvt_f32_u32 v209, v42")
    e("  v_add_u32 v45, 1024, v45")
    e("  v_cvt_f32_u32 v210, v45")
    e("  v_lshlrev_b32 v42, 3, v2")
    e("  v_cvt_f32_u32 v211, v42")
    e("  s_mul_i32 s12, s3, 3072")
    e("  v_mov_b32 v46, s12")
    e("  v_lshrrev_b32 v42, 1, v3")
    e("  v_and_b32 v43, 1, v3")
    e("  v_lshlrev_b32 v43, 2, v43")
    e("  v_lshl_add_u32 v42, v42, 7, v43")
    e("  v_lshl_add_u32 v42, v2, 3, v42")
    e("  v_lshl_add_u32 v204, v42, 2, v46")
    e("  v_lshlrev_b32 v42, 6, v3")
    e("  v_add_u32 v42, 256, v42")
    e("  v_lshl_add_u32 v43, v2, 2, v42")
    e("  v_lshl_add_u32 v44, v2, 1, v42")
    e("  v_cmp_gt_u32 vcc, 2, v3")
    e("  v_add_u32 v45, 2, v43")
    e("  v_add_u32 v47, 32, v44")
    e("  v_cndmask_b32 v43, v44, v43, vcc")
    e("  v_cndmask_b32 v45, v47, v45, vcc")
    e("  v_lshl_add_u32 v205, v43, 2, v46")
    e("  v_lshl_add_u32 v206, v45, 2, v46")
    e("  v_lshlrev_b32 v42, 6, v3")
    e("  v_add3_u32 v42, v42, v2, 0")
    e("  v_add_u32 v42, 512, v42")
    e("  v_lshl_add_u32 v207, v42, 2, v46")
    e("  s_lshl_b32 s12, s3, 9")
    e("  s_add_u32 s12, s12, %d" % L_PT)
    e("  v_and_b32 v42, 31, v1")
    e("  v_lshlrev_b32 v42, 4, v42")
    e("  v_add_u32 v216, s12, v42")
    e("  v_lshlrev_b32 v42, 6, v3")
    e("  v_add_u32 v217, s12, v42")
    e("  v_lshrrev_b32 v41, 8, v0")
    e("  v_and_b32 v40, 255, v0")
    e("  v_mul_u32_u24 v42, 12288, v41")
    e("  v_lshlrev_b32 v43, 3, v40")
    e("  v_cmp_gt_u32 vcc, 16, v40")
    for ee in range(0, 8, 2):
        e("  v_add_u32 v44, %d, v43" % ee)
        e("  v_add_u32 v45, %d, v43" % (ee + 1))
        e("  v_cvt_f32_u32 v46, v44")
        e("  v_cvt_f32_u32 v47, v45")
        e("  v_cvt_pk_bf16_f32 v46, v46, v47")
        e("  v_and_b32 v47, %s, v46" % S_LO)
        e("  v_lshrrev_b32 v46, 16, v46")
        e("  v_subrev_u32 v47, 17024, v47")
        e("  v_subrev_u32 v46, 17024, v46")
        e("  v_cndmask_b32 v47, v47, v44, vcc")
        e("  v_cndmask_b32 v46, v46, v45, vcc")
        e("  v_lshl_add_u32 v%d, v47, 2, v42" % (116 + ee))
        e("  v_lshl_add_u32 v%d, v46, 2, v42" % (117 + ee))
    e("  v_mul_u32_u24 v44, %d, v41" % (2 * KRW))
    e("  v_lshl_add_u32 v44, v40, 4, v44")
    e("  v_add_u32 v219, %d, v44" % (L_K + 64))
    e("  s_waitcnt vmcnt(21)")
    e("  s_cmp_lt_u32 s3, 4")
    e("  s_cbranch_scc1 L_kp")
    e("  s_waitcnt vmcnt(8)")
    L2E = 1.4426950408889634
    L2E_HI = struct.unpack("<f", struct.pack("<I", f2u(L2E) & 0xFFFFFF00))[0]
    L2E_LO = L2E - L2E_HI
    e("L_kp:")
    for k in range(7):
        e("  v_lshlrev_b32 v%d, 16, v%d" % (232 + k, 232 + k))
    e("  v_mul_f32 v42, 0x%08x, v238" % f2u(L2E_HI))
    e("  v_mul_f32 v43, 0x%08x, v238" % f2u(L2E_LO * math.log(2.0)))
    e("  v_exp_f32 v42, v42")
    e("  s_nop 0")
    e("  v_fma_f32 v42, v42, v43, v42")
    e("  v_cvt_pk_bf16_f32 v42, v42, v42")
    e("  v_lshlrev_b32 v44, 16, v42")
    e("  v_mul_f32 v42, 0x%08x, v44" % f2u(L2E))
    e("  v_mul_f32 v43, 0x%08x, v44" % f2u(1.0 / (2.0 * math.pi)))
    e("  v_pk_mul_f32 v[232:233], v[232:233], v[42:43]")
    e("  v_pk_mul_f32 v[46:47], v[234:235], v[44:45] op_sel:[0,0] op_sel_hi:[1,0]")
    e("  v_pk_mul_f32 v[48:49], v[236:237], v[46:47] op_sel:[0,0] op_sel_hi:[0,1]")
    e("  v_pk_fma_f32 v[234:235], v[236:237], v[46:47], v[48:49] op_sel:[1,1,0] op_sel_hi:[1,0,1] neg_lo:[1,0,0]")
    e("  v_max_f32 v50, |v234|, |v235|")
    e("  s_nop 1")
    for sh in (1, 2, 4, 8):
        e("  v_max_f32_dpp v50, v50, v50 row_shr:%d row_mask:0xf bank_mask:0xf bound_ctrl:0" % sh)
        e("  s_nop 1")
    e("  v_max_f32_dpp v50, v50, v50 row_bcast:15 row_mask:0xa bank_mask:0xf")
    e("  s_nop 1")
    e("  v_readlane_b32 s12, v50, 31")
    e("  s_nop 1")
    e("  v_mov_b32 v50, s12")
    e("  v_frexp_exp_i32_f32 v50, v50")
    e("  v_sub_u32 v51, 0, v50")
    e("  v_ldexp_f32 v218, 1.0, v50")
    e("  v_ldexp_f32 v234, v234, v51")
    e("  v_ldexp_f32 v235, v235, v51")
    e("  ds_write_b128 v216, v[232:235]")
    e("  s_cmp_ge_u32 s3, 4")
    e("  s_cbranch_scc1 L_uphase")

    e("  s_setprio 2")
    e("  s_waitcnt vmcnt(9)")
    stamp(1)
    e("L_kv0:")
    WL = [34, 35, 36, 37]; WH = [38, 39, 40, 41]
    e("  v_and_b32 v34, %s, v30" % S_LO)
    e("  v_lshrrev_b32 v35, 16, v30")
    e("  v_and_b32 v36, %s, v31" % S_LO)
    e("  v_lshrrev_b32 v37, 16, v31")
    e("  v_lshlrev_b32 v38, 16, v32")
    e("  v_and_b32 v39, %s, v32" % S_M)
    e("  v_lshlrev_b32 v40, 16, v33")
    e("  v_and_b32 v41, %s, v33" % S_M)
    def kvblock(R, labs):
        rows = range(4 * R, 4 * R + 4)
        A, B, C, D, T = 44, 52, 60, 68, 76
        ix = lambda r, c: 2 * (r & 3) + c
        for r in rows:
            for c in range(2):
                dot2(A + ix(r, c), v(10 + r), v((WL, WH)[c][3]))
                dot2(B + ix(r, c), v(10 + r + 1), v((WL, WH)[c][2]))
        for r in rows:
            for c in range(2):
                dot2(C + ix(r, c), v(10 + r + 2), v((WL, WH)[c][1]))
                e("  v_cvt_pk_bf16_f32 v%d, v%d, v%d" % (T + ix(r, c), A + ix(r, c), B + ix(r, c)))
        for r in rows:
            for c in range(2):
                dot2(D + ix(r, c), v(10 + r + 3), v((WL, WH)[c][0]))
                dot2(A + ix(r, c), v(T + ix(r, c)), S_ONES)
        chunk_end()
        e("%s:" % labs[0])
        for r in rows:
            for c in range(2):
                e("  v_cvt_pk_bf16_f32 v%d, v%d, v%d" % (T + ix(r, c), A + ix(r, c), C + ix(r, c)))
        for r in rows:
            for c in range(2):
                dot2(A + ix(r, c), v(T + ix(r, c)), S_ONES)
        for r in rows:
            for c in range(2):
                e("  v_cvt_pk_bf16_f32 v%d, v%d, v%d" % (T + ix(r, c), A + ix(r, c), D + ix(r, c)))
        for r in rows:
            for c in range(2):
                dot2(A + ix(r, c), v(T + ix(r, c)), S_ONES)
        if R == 0:
            e("  s_cbranch_execz L_kvskipw")
            e("  s_waitcnt vmcnt(1)")
            e("L_kvskipw:")
        for r in rows:
            e("  v_and_b32 v%d, %s, v%d" % (B + ix(r, 0), S_LO, 21 + r))
            e("  v_and_b32 v%d, %s, v%d" % (B + ix(r, 1), S_M, 21 + r))
        for r in rows:
            e("  v_cvt_pk_bf16_f32 v%d, v%d, v%d" % (T + (r & 3), A + ix(r, 0), A + ix(r, 1)))
        for r in rows:
            for c in range(2):
                dot2(C + ix(r, c), v(T + (r & 3)), v(B + ix(r, c)))
        e("  s_nop 1")
        for r in rows:
            e("  v_cvt_pk_bf16_f32 v%d, v%d, v%d" % (88 + r, C + ix(r, 0), C + ix(r, 1)))
        chunk_end()
        if labs[1]:
            e("%s:" % labs[1])
    kvblock(0, ["L_kv1", "L_kv2"])
    kvblock(1, ["L_kv3", None])
    for m in range(4):
        e("  v_perm_b32 v%d, v%d, v%d, %s" % (44 + m, 88 + 6 - 2 * m, 88 + 7 - 2 * m, S_P0))
        e("  v_perm_b32 v%d, v%d, v%d, %s" % (48 + m, 88 + 6 - 2 * m, 88 + 7 - 2 * m, S_P1))
    e("  ds_write_b128 v4, v[44:47]")
    e("  ds_write_b128 v4, v[48:51] offset:80")
    e("  ds_read_b128 v[52:55], v5")
    e("  ds_read_b128 v[56:59], v5 offset:1280")
    e("  s_waitcnt vmcnt(0)")
    e("  v_add_u32 v240, 1, v240")
    e("  v_add_u32 v241, 8, v241")
    e("  v_mov_b32 v10, %d" % (L_CNT + 8))
    e("  ds_write_b32 v10, v241")
    e("  s_waitcnt lgkmcnt(2)")
    e("  global_store_dwordx4 v6, v[52:55], s[52:53] sc1")
    e("  s_waitcnt lgkmcnt(1)")
    e("  global_store_dwordx4 v7, v[56:59], s[52:53] sc1")
    e("  s_setprio 0")
    stamp(2)
    e("  s_branch L_kgen")

    e("L_uphase:")
    e("  s_setprio 2")
    e("  s_waitcnt vmcnt(0)")
    stamp(1)
    for m in range(4):
        e("  v_perm_b32 v%d, v%d, v%d, %s" % (44 + m, 10 + 6 - 2 * m, 10 + 7 - 2 * m, S_P0))
        e("  v_perm_b32 v%d, v%d, v%d, %s" % (48 + m, 10 + 6 - 2 * m, 10 + 7 - 2 * m, S_P1))
    e("  ds_write_b128 v4, v[44:47]")
    e("  ds_write_b128 v4, v[48:51] offset:80")
    e("  ds_read_b128 v[52:55], v5")
    e("  ds_read_b128 v[56:59], v5 offset:1280")
    e("  s_waitcnt lgkmcnt(1)")
    e("  global_store_dwordx4 v6, v[52:55], s[52:53] sc1")
    e("  s_waitcnt lgkmcnt(0)")
    e("  global_store_dwordx4 v7, v[56:59], s[52:53] sc1")
    e("  global_load_dwordx4 v[124:127], v243, s[16:17]")
    e("  global_load_dwordx4 v[128:131], v243, s[16:17] offset:1024")
    e("  global_load_dwordx4 v[132:135], v241, s[46:47]")
    e("  global_load_dwordx4 v[244:247], v242, s[42:43]")
    e("  global_load_dwordx4 v[248:251], v242, s[42:43] offset:1024")
    e("  s_setprio 0")
    stamp(2)

    e("L_kgen:")
    e("  ds_read_b128 v[40:43], v217")
    e("  s_mov_b32 s59, 0")
    e("  s_mov_b32 s34, 0")
    e("L_kloop:")
    A0, B0 = 100, 112
    for mm in range(4):
        P = 40 + 4 * (mm & 1)
        Z, CB = P, P + 2
        e("  s_waitcnt lgkmcnt(0)")
        if mm in (0, 2):
            e("L_kb%d:" % mm)
        nxt = (mm + 1) * 16 if mm < 3 else 256
        e("  ds_read_b128 %s, v217 offset:%d" % (quad(40 + 4 * ((mm + 1) & 1)), nxt))
        lam = [("v[208:209]", 0), ("v[208:209]", 1), ("v[210:211]", 0), ("v[210:211]", 1)]
        for a in range(4):
            l, h = lam[a]
            e("  v_pk_mul_f32 %s, %s, %s op_sel:[0,%d] op_sel_hi:[1,%d]" % (pair(92 + 2 * a), pair(Z), l, h, h))
        for a in range(4):
            e("  v_fract_f32 v%d, v%d" % (24 + a, 93 + 2 * a))
        for a in range(4):
            e("  v_exp_f32 v%d, v%d" % (16 + 2 * a, 92 + 2 * a))
            e("  v_cos_f32 v%d, v%d" % (8 + 2 * a, 24 + a))
            e("  v_sin_f32 v%d, v%d" % (9 + 2 * a, 24 + a))
        e("  s_nop 0")
        for a in range(4):
            e("  v_pk_mul_f32 %s, %s, %s op_sel:[0,0] op_sel_hi:[1,0]" % (pair(76 + 2 * a), pair(8 + 2 * a), pair(16 + 2 * a)))
        e("  v_pk_mul_f32 v[30:31], v[82:83], %s op_sel:[0,0] op_sel_hi:[0,1]" % pair(CB))
        for a in range(3):
            e("  v_cvt_pk_f16_f32 v%d, v%d, v%d" % (A0 + 4 * a + mm, 76 + 2 * a, 77 + 2 * a))
        e("  v_pk_fma_f32 v[30:31], v[82:83], %s, v[30:31] op_sel:[1,1,0] op_sel_hi:[1,0,1] neg_lo:[1,0,0] neg_hi:[1,0,1]" % pair(CB))
        e("  v_cvt_pk_f16_f32 v%d, v30, v31" % (B0 + mm))
        if mm in (1, 3):
            chunk_end()
        if mm == 1:
            e("  s_cmp_eq_u32 s34, 0")
            e("  s_cbranch_scc1 L_skip_arr2")
            e("  s_mov_b32 s34, 0")
            e("  s_waitcnt vmcnt(1)")
            e("  s_cmp_ge_u32 s3, 4")
            e("  s_cbranch_scc1 L_arr2w")
            e("  s_waitcnt vmcnt(0)")
            e("L_arr2w:")
            e("  s_mov_b64 exec, 1")
            e("  v_and_b32 v51, 31, v51")
            e("  v_cmp_eq_u32 vcc, 31, v51")
            e("  s_and_b64 exec, exec, vcc")
            e("  s_cbranch_execz L_arr_done")
            e("  s_mov_b64 exec, 0xffffffff")
            e("  v_lshlrev_b32 v52, 10, v1")
            e("  s_lshl_b32 s8, s4, 7")
            e("  s_add_u32 s8, s8, 0x%x" % WS_MB)
            e("  v_add_u32 v52, s8, v52")
            e("  global_atomic_add v52, v49, s[52:53] sc1")
            e("L_arr_done:")
            e("  s_mov_b64 exec, -1")
            e("L_skip_arr2:")
    e("  v_add_u32 v217, 256, v217")
    e("  s_nop 0")
    for t in range(3):
        e("  v_mfma_f32_16x16x32_f16 %s, %s, %s, %s" % (quad(220 + 4 * t), quad(A0 + 4 * t), quad(B0), quad(220 + 4 * t)))
    e("  s_cmp_lg_u32 s59, 0")
    e("  s_cbranch_scc1 L_kdone")
    e("  s_mov_b32 s59, 1")
    e("  v_mov_b32 v48, %d" % L_CNT)
    e("  v_mov_b32 v49, 1")
    grp_off(50, 0)
    e("  s_waitcnt vmcnt(5)")
    e("  s_cmp_ge_u32 s3, 4")
    e("  s_cbranch_scc1 L_arr0")
    e("  s_waitcnt vmcnt(0)")
    e("L_arr0:")
    stamp(3)
    e("  s_mov_b64 exec, 1")
    e("  ds_add_rtn_u32 v52, v48, v49")
    e("  s_waitcnt lgkmcnt(0)")
    e("  v_cmp_eq_u32 vcc, 7, v52")
    e("  s_and_b64 exec, exec, vcc")
    e("  s_cbranch_execz L_arr1")
    e("  global_atomic_add v51, v50, v49, s[50:51] sc0 sc1")
    e("  s_mov_b32 s34, 1")
    e("L_arr1:")
    e("  s_mov_b64 exec, -1")
    e("  s_cmp_lt_u32 s3, 4")
    e("  s_cbranch_scc1 L_kloop")
    e("  s_waitcnt vmcnt(3)")
    e("  s_cmp_eq_u32 s34, 1")
    e("  s_cbranch_scc1 L_gw")
    e("  s_waitcnt vmcnt(2)")
    e("L_gw:")
    gate_block()
    e("  s_branch L_kloop")
    e("L_kdone:")
    stamp(4)
    for r in range(12):
        e("  v_mul_f32 v%d, v218, v%d" % (220 + r, 220 + r))
    e("  ds_write_b128 v204, v[220:223]")
    e("  ds_write_b64 v205, v[224:225]")
    e("  ds_write_b64 v206, v[226:227]")
    for r in range(4):
        e("  ds_write_b32 v207, v%d offset:%d" % (228 + r, 64 * r))
    e("  s_cmp_lt_u32 s3, 4")
    e("  s_cbranch_scc1 L_nossm")
    e("  s_waitcnt vmcnt(0)")
    e("  ds_write_b128 v240, v[244:247]")
    e("  ds_write_b128 v240, v[248:251] offset:1024")
    e("L_nossm:")
    e("  s_waitcnt lgkmcnt(0)")
    e("  s_barrier")
    for ee in range(8):
        e("  ds_read2st64_b32 %s, v%d offset0:0 offset1:12" % (pair(48 + 4 * ee), 116 + ee))
        e("  ds_read2st64_b32 %s, v%d offset0:24 offset1:36" % (pair(50 + 4 * ee), 116 + ee))
    e("  s_lshl_b32 s8, s6, 1")
    e("  v_mov_b32 v7, s8")
    e("  global_load_dword v252, v7, s[32:33]")
    e("  global_load_dword v253, v7, s[44:45]")
    e("  s_cmp_lg_u32 s3, 4")
    e("  s_cbranch_scc1 L_nogarr")
    e("  v_mov_b32 v45, 1")
    grp_off(46, 4)
    e("  s_mov_b64 exec, 1")
    e("  global_atomic_add v47, v46, v45, s[50:51] sc0 sc1")
    e("  s_mov_b64 exec, -1")
    e("L_nogarr:")
    for p in range(4):
        e("  s_waitcnt lgkmcnt(%d)" % (12 - 4 * p))
        for h in range(2):
            b = 48 + 8 * p + 4 * h
            e("  v_pk_add_f32 %s, %s, %s" % (pair(b), pair(b), pair(b + 2)))
        for h in range(2):
            b = 48 + 8 * p + 4 * h
            e("  v_add_f32 v%d, v%d, v%d" % (b, b, b + 1))
        e("  v_cvt_pk_bf16_f32 v%d, v%d, v%d" % (84 + p, 48 + 8 * p, 52 + 8 * p))
    e("  ds_write_b128 v219, v[84:87]")
    e("  s_cmp_ge_u32 s3, 4")
    e("  s_cbranch_scc1 L_upost")

    poll("L_pollT", 242, 240)
    stamp(5)
    for k in range(4):
        e("  buffer_load_dwordx4 %s, v202, s[36:39], 0 offen offset:%d sc1" % (quad(8 + 4 * k), 1024 * k))
    for k in range(4):
        e("  buffer_load_dword v%d, v203, s[36:39], 0 offen offset:%d sc1" % (24 + k, 1024 * k))
    e("  s_waitcnt lgkmcnt(0)")
    e("  s_barrier")
    def kreg(st, sp):
        return 32 + 64 * st + 4 * sp
    def ureg(st, bp):
        return 32 + 64 * st + 32 + 4 * bp
    def kloads(rc, n, st):
        ins = []
        for sp in range(n):
            ins.append("  ds_read2_b32 %s, v%d offset0:%d offset1:%d" % (pair(kreg(st, sp)), 192 + sp, 16 * rc, 16 * rc + 1))
            ins.append("  ds_read2_b32 %s, v%d offset0:%d offset1:%d" % (pair(kreg(st, sp) + 2), 192 + sp, 16 * rc + 2, 16 * rc + 3))
        return ins
    def uloads(rc, n, st):
        ins = []
        for bp in range(n):
            beta = 8 * bp - rc
            ins.append("  ds_read_b128 %s, v201 offset:%d" % (quad(ureg(st, bp)), 3584 - 64 * beta))
        return ins
    stages = [(0, rc) for rc in range(8)] + [(1, rc) for rc in range(8)]
    def nfr(ps):
        return TA if ps == 0 else 8
    for x in kloads(0, TA, 0):
        e(x)
    for k in range(4):
        b = 8 + 4 * k
        e("  s_waitcnt vmcnt(%d)" % (3 - k))
        e("  ds_write_b128 v200, %s offset:%d" % (quad(b), 1024 * k))
        e("  v_alignbit_b32 v28, v%d, v%d, 16" % (b + 1, b))
        e("  v_alignbit_b32 v29, v%d, v%d, 16" % (b + 2, b + 1))
        e("  v_alignbit_b32 v30, v%d, v%d, 16" % (b + 3, b + 2))
        e("  v_alignbit_b32 v31, v%d, v%d, 16" % (24 + k, b + 3))
        e("  ds_write_b128 v200, v[28:31] offset:%d" % (1024 * k + CPY))
        e("  s_nop 1")
    stamp(6)
    for x in uloads(0, TA, 0):
        e(x)
    e("  s_lshl_b32 s8, s3, 12")
    e("  s_add_u32 s8, s8, %d" % L_Y)
    e("  v_lshlrev_b32 v5, 7, v3")
    e("  v_lshl_add_u32 v5, v2, 2, v5")
    e("  v_add_u32 v5, s8, v5")
    e("  v_mov_b32 v6, %d" % (L_CNT + 4))
    e("  v_mov_b32 v7, 1")
    def ywrite(tiles):
        ins = []
        for t in tiles:
            a = 160 + 4 * t
            ins.append("  v_cvt_pk_bf16_f32 v%d, v%d, v%d" % (8 + 2 * t, a, a + 1))
            ins.append("  v_cvt_pk_bf16_f32 v%d, v%d, v%d" % (9 + 2 * t, a + 2, a + 3))
            ins.append("  ds_write_b32 v5, v%d offset:%d" % (8 + 2 * t, 512 * t))
            ins.append("  ds_write_b32 v5, v%d offset:%d" % (9 + 2 * t, 512 * t + 64))
        return ins
    for si, (ps, rc) in enumerate(stages):
        st = si & 1
        e("  s_waitcnt lgkmcnt(0)")
        mf = []
        for sp in range(8):
            for bp in range(8 - sp):
                t = sp + bp
                if (t < TA) == (ps == 0):
                    mf.append("  v_mfma_f32_16x16x32_bf16 %s, %s, %s, %s" % (quad(160 + 4 * t), quad(ureg(st, bp)), quad(kreg(st, sp)), quad(160 + 4 * t)))
        nl = []
        if si + 1 < len(stages):
            ps2, rc2 = stages[si + 1]
            n = nfr(ps2)
            kl, ul = kloads(rc2, n, st ^ 1), uloads(rc2, n, st ^ 1)
            for i in range(n):
                nl += [kl[2 * i], kl[2 * i + 1], ul[i]]
        extra = []
        if (ps, rc) == (1, 0):
            extra = ywrite(range(TA))
        per = max(1, -(-len(nl) // len(mf)))
        li = 0
        for i, x in enumerate(mf):
            e(x)
            for _ in range(per):
                if li < len(nl):
                    e(nl[li]); li += 1
            if i >= 4 and extra:
                for _ in range(2):
                    if extra:
                        e(extra.pop(0))
        while li < len(nl):
            e(nl[li]); li += 1
        for x in extra:
            e(x)
        if (ps, rc) == (1, 1):
            pass
        if (ps, rc) == (1, 0):
            L.append("@PUBLISH")
    idx = L.index("@PUBLISH")
    assert L[idx + 1].strip() == "s_waitcnt lgkmcnt(0)"
    L[idx:idx + 2] = ["  s_waitcnt lgkmcnt(0)", "  s_mov_b64 exec, 1", "  ds_add_u32 v6, v7", "  s_mov_b64 exec, -1"]
    e("  s_nop 7")
    stamp(7)
    for x in ywrite(range(TA, 8)):
        e(x)
    e("  s_waitcnt vmcnt(0)")
    dsel()
    e("  s_branch L_final")

    e("L_upost:")
    e("  s_waitcnt lgkmcnt(0)")
    e("  s_barrier")
    stamp(5)
    e("  s_cmp_lg_u32 s3, 4")
    e("  s_cbranch_scc1 L_uwait")
    e("  s_waitcnt vmcnt(0)")
    e("  s_mov_b64 exec, 1")
    e("  v_and_b32 v47, 31, v47")
    e("  v_cmp_eq_u32 vcc, 31, v47")
    e("  s_and_b64 exec, exec, vcc")
    e("  s_cbranch_execz L_garr_done")
    e("  s_mov_b64 exec, -1")
    e("  v_lshlrev_b32 v52, 7, v1")
    e("  v_add_u32 v52, 0x%x, v52" % (WS_MB + 4))
    for c in range(4):
        e("  global_atomic_add v52, v45, s[52:53] sc1")
        if c < 3:
            e("  v_add_u32 v52, 8192, v52")
    e("L_garr_done:")
    e("  s_mov_b64 exec, -1")
    e("  v_mov_b32 v10, %d" % (L_CNT + 8))
    e("  ds_read_b32 v11, v10")
    e("  s_lshl_b32 s8, s2, 7")
    e("  s_add_u32 s8, s8, 0x%x" % (WS_MB + 4))
    e("  v_mov_b32 v10, s8")
    e("  s_waitcnt lgkmcnt(0)")
    poll("L_pollG", 10, 11)
    e("  v_lshlrev_b32 v40, 4, v1")
    e("  v_add_u32 v41, 0x%x, v40" % WS_G)
    e("  v_add_u32 v42, 4096, v41")
    for c in range(8):
        e("  global_load_dwordx4 %s, v%d, s[52:53] offset:%d sc1" % (quad(72 + 4 * c), 41 + (c >> 2), 1024 * (c & 3)))
    for c in range(8):
        e("  s_waitcnt vmcnt(%d)" % (7 - c))
        e("  ds_write_b128 v40, %s offset:%d" % (quad(72 + 4 * c), L_G + 1024 * c))
    e("  v_mov_b32 v10, %d" % (L_CNT + 12))
    e("  v_mov_b32 v11, 1")
    e("  s_waitcnt lgkmcnt(0)")
    e("  ds_write_b32 v10, v11")
    stamp(6)
    e("L_uwait:")
    e("  s_waitcnt vmcnt(0)")
    dsel()
    e("  v_mov_b32 v10, %d" % L_CNT)
    e("  s_mov_b32 s58, 0")
    e("L_lspin:")
    e("  ds_read_b128 v[12:15], v10")
    e("  s_waitcnt lgkmcnt(0)")
    e("  v_lshl_add_u32 v12, v15, 4, v13")
    e("  v_cmp_ne_u32 vcc, 20, v12")
    e("  s_add_u32 s58, s58, 1")
    e("  s_cmp_ge_u32 s58, %d" % (SPIN_MAX * 4))
    e("  s_cbranch_scc1 L_lspin_done")
    e("  s_cbranch_vccz L_lspin_done")
    e("  s_sleep 4")
    e("  s_branch L_lspin")
    e("L_lspin_done:")
    e("  v_subrev_u32 v254, 256, v0")
    if TA == 4:
        combine(4, 254, 0)
    else:
        raise SystemExit("TA != 4 unsupported in combine split for now")
    stamp(7)

    e("L_final:")
    e("  s_waitcnt lgkmcnt(0)")
    e("  s_barrier")
    stamp(8)
    combine(2, 0, 1024)
    stamp(9)
    stamp_flush(10)
    e("L_end:")
    e("  s_endpgm")

def main():
    e(HEADER.rstrip("\n"))
    e("; @launch grid=(256,1,1) block=(512,1,1) lds=%d" % LDS_TOTAL)
    e('.amdgcn_target "amdgcn-amd-amdhsa--gfx950"')
    e(".text")
    gen()
    e('.section .rodata,"a"')
    e(".p2align 6")
    e(".amdhsa_kernel %s" % KN)
    e("  .amdhsa_next_free_vgpr 256")
    e("  .amdhsa_next_free_sgpr 102")
    e("  .amdhsa_accum_offset 256")
    e("  .amdhsa_group_segment_fixed_size 0")
    e("  .amdhsa_kernarg_size 152")
    e("  .amdhsa_user_sgpr_count 2")
    e("  .amdhsa_user_sgpr_kernarg_segment_ptr 1")
    e("  .amdhsa_system_sgpr_workgroup_id_x 1")
    e(".end_amdhsa_kernel")
    args = [a for a in sys.argv[1:] if not a.startswith("--")]
    open(args[0] if args else OUT, "w").write("\n".join(L) + "\n")

main()
```

```python
import struct, sys, math

NAME = "gated_mix__ssm_conv_s4__ssm_conv_h3__prompt"
OUT = "cdna_kernels/%s.s" % NAME
KN = NAME + "_kernel"

def f2u(x):
    return struct.unpack("<I", struct.pack("<f", x))[0]

L = []
def e(s=""):
    L.append(s)

STAMP = "--stamp" in sys.argv
NOWARM = "--nowarm" in sys.argv
NOPF = "--nopf" in sys.argv
TA = 4
for a in sys.argv:
    if a.startswith("--ta="):
        TA = int(a[5:])
NPF = 2
WS_UT, WS_KVT, WS_G, WS_MB, WS_ST = 0x000000, 0x200000, 0x600000, 0x700000, 0x800000

def stamp(i):
    if STAMP:
        e("  s_memrealtime s[%d:%d]" % (60 + 2 * i, 61 + 2 * i))
        e("  s_memtime s[%d:%d]" % (80 + 2 * i, 81 + 2 * i))
def stamp_flush(n):
    if not STAMP:
        return
    e("  s_waitcnt vmcnt(0) lgkmcnt(0)")
    e("  s_mov_b64 exec, 1")
    e("  v_lshrrev_b32 v124, 6, v0")
    e("  v_lshlrev_b32 v124, 8, v124")
    e("  s_lshl_b32 s100, s2, 11")
    e("  s_add_u32 s100, s100, 0x%x" % WS_ST)
    e("  v_add_u32 v124, s100, v124")
    for i in range(n):
        e("  v_mov_b32 v126, s%d" % (60 + 2 * i))
        e("  v_mov_b32 v127, s%d" % (61 + 2 * i))
        e("  global_store_dwordx2 v124, v[126:127], s[52:53] offset:%d" % (8 * i))
        e("  s_nop 1")
        e("  v_mov_b32 v126, s%d" % (80 + 2 * i))
        e("  v_mov_b32 v127, s%d" % (81 + 2 * i))
        e("  global_store_dwordx2 v124, v[126:127], s[52:53] offset:%d" % (128 + 8 * i))
        e("  s_nop 1")

HEADER = open("cdna_kernels/%s.s.ref" % NAME).read().split("; Override launch")[0]

def pair(r):
    return "v[%d:%d]" % (r, r + 1)
def quad(r):
    return "v[%d:%d]" % (r, r + 3)
def v(r):
    return "v%d" % r

S_M, S_LO, S_ONES, S_P0, S_P1 = "s7", "s54", "s55", "s56", "s57"

CPY = 4640
RW = 9216
KRW = 4224
L_TAB = 0
L_CNT = 24576
L_PT = 24704
L_G = L_PT + 4096
L_Y = L_G + 8192
L_U = L_Y + 4 * 4096
L_K = L_U + 4 * RW
LDS_TOTAL = L_K + 4 * KRW
L_TT = L_G
TTW = 2560
SPIN_MAX = 1 << 18

def dot2(d, a, b, c="0"):
    e("  v_dot2_f32_bf16 v%d, %s, %s, %s" % (d, a, b, c))

def poll(label, off_reg, want_reg, data=(9, 14, 15, 16)):
    e("  s_mov_b32 s58, 0")
    e("  s_mov_b64 exec, 1")
    for d in data[:3]:
        e("  global_load_dword v%d, v%d, s[52:53] sc1" % (d, off_reg))
        e("  s_sleep 1")
    e("%s:" % label)
    for i in range(4):
        e("  global_load_dword v%d, v%d, s[52:53] sc1" % (data[(i + 3) % 4], off_reg))
        e("  s_waitcnt vmcnt(3)")
        e("  v_cmp_ne_u32 vcc, v%d, v%d" % (want_reg, data[i]))
        e("  s_add_u32 s58, s58, 1")
        e("  s_nop 0")
        e("  s_cbranch_vccz %s_done" % label)
        e("  s_sleep 1")
    e("  s_cmp_lt_u32 s58, %d" % SPIN_MAX)
    e("  s_cbranch_scc1 %s" % label)
    e("%s_done:" % label)
    e("  s_waitcnt vmcnt(0)")
    e("  s_mov_b64 exec, -1")

def chunk_end():
    e("  s_cbranch_execz L_warm_ret")

def grp_off(dst, extra):
    e("  s_lshr_b32 s8, s4, 1")
    e("  s_lshl_b32 s8, s8, 6")
    e("  s_and_b32 s9, s4, 1")
    e("  s_lshl_b32 s9, s9, 4")
    e("  s_add_u32 s8, s8, s9")
    if extra:
        e("  s_add_u32 s8, s8, %d" % extra)
    e("  v_mov_b32 v%d, s8" % dst)

def combine(nl, tidreg, lbase):
    sh = {4: 3, 2: 2}[nl]
    e("  v_lshlrev_b32 v5, %d, v%d" % (sh, tidreg))
    e("  v_sub_u32 v6, %d, v5" % (L_U + 4096 - 2 * lbase - 2 * nl))
    e("  v_lshlrev_b32 v4, %d, v%d" % (sh + 1, tidreg))
    e("  v_lshlrev_b32 v7, %d, v%d" % (sh + 9, tidreg))
    e("  s_lshl_b32 s8, s6, 1")
    e("  s_add_u32 s8, s8, %d" % (lbase * 1024))
    e("  v_add_u32 v7, s8, v7")
    rd = "ds_read_b64" if nl == 4 else "ds_read_b32"
    nr = nl // 2
    def regs(b):
        return pair(b) if nl == 4 else v(b)
    for w in range(4):
        e("  %s %s, v5 offset:%d" % (rd, regs(32 + 2 * w), L_Y + 4096 * w + 2 * lbase))
    for w in range(4):
        e("  %s %s, v6 offset:%d" % (rd, regs(40 + 2 * w), RW * w))
    if nl == 4:
        e("  ds_read_b128 v[48:51], v4 offset:%d" % (L_G + 4 * lbase))
    else:
        e("  ds_read_b64 v[48:49], v4 offset:%d" % (L_G + 4 * lbase))
    e("  s_waitcnt lgkmcnt(0)")
    E = [(k, c) for k in range(nl) for c in range(2)]
    T1, T2, YA, YB, PK, UM, GS = 72, 80, 88, 96, 104, 112, 120
    sel = lambda hi: ("s13" if hi else "s12")
    pad = (lambda: e("  s_nop 2")) if nl == 2 else (lambda: None)
    for (k, c) in E:
        i = 2 * k + c; ee = nl - 1 - k
        dot2(T1 + i, v(40 + 4 * c + (ee >> 1)), v(64 + 2 * c + (ee & 1)))
        dot2(T2 + i, v(42 + 4 * c + (ee >> 1)), v(68 + 2 * c + (ee & 1)))
        dot2(YA + i, v(32 + 4 * c + (k >> 1)), sel(k & 1))
        dot2(YB + i, v(34 + 4 * c + (k >> 1)), sel(k & 1))
        if ee & 1:
            e("  v_and_b32 v%d, %s, v%d" % (UM + i, S_M, 40 + 4 * c + (ee >> 1)))
        else:
            e("  v_lshlrev_b32 v%d, 16, v%d" % (UM + i, 40 + 4 * c + (ee >> 1)))
    pad()
    for (k, c) in E:
        i = 2 * k + c
        e("  v_cvt_pk_bf16_f32 v%d, v%d, v%d" % (PK + i, T1 + i, T2 + i))
    for (k, c) in E:
        i = 2 * k + c
        dot2(T1 + i, v(PK + i), "s12", v(YA + i))
        dot2(T2 + i, v(PK + i), "s13", v(YB + i))
    for k in range(nl):
        e("  v_and_b32 v%d, %s, v%d" % (GS + k, S_LO, 48 + k))
        e("  v_and_b32 v%d, %s, v%d" % (GS + 4 + k, S_M, 48 + k))
    for (k, c) in E:
        i = 2 * k + c
        e("  v_cvt_pk_bf16_f32 v%d, v%d, v%d" % (PK + i, T1 + i, T2 + i))
    for (k, c) in E:
        i = 2 * k + c
        dot2(T1 + i, v(PK + i), v(GS + k))
        dot2(T2 + i, v(PK + i), v(UM + i))
    pad()
    for (k, c) in E:
        i = 2 * k + c
        e("  v_cvt_pk_bf16_f32 v%d, v%d, v%d" % (PK + i, T1 + i, T2 + i))
    for (k, c) in E:
        i = 2 * k + c
        dot2(T2 + i, v(PK + i), v(GS + 4 + k))
    pad()
    for (k, c) in E:
        i = 2 * k + c
        e("  v_cvt_pk_bf16_f32 v%d, v%d, v%d" % (PK + i, T1 + i, T2 + i))
    for (k, c) in E:
        i = 2 * k + c
        dot2(T1 + i, v(PK + i), S_ONES)
    e("  s_nop 2")
    for k in range(nl):
        e("  v_cvt_pk_bf16_f32 v%d, v%d, v%d" % (T2 + k, T1 + 2 * k, T1 + 2 * k + 1))
        e("  global_store_dword v7, v%d, s[48:49] offset:%d" % (T2 + k, 1024 * k))

def dsel():
    e("  v_and_b32 v64, %s, v252" % S_LO)
    e("  v_lshlrev_b32 v65, 16, v252")
    e("  v_lshrrev_b32 v66, 16, v252")
    e("  v_and_b32 v67, %s, v252" % S_M)
    e("  v_and_b32 v68, %s, v253" % S_LO)
    e("  v_lshlrev_b32 v69, 16, v253")
    e("  v_lshrrev_b32 v70, 16, v253")
    e("  v_and_b32 v71, %s, v253" % S_M)
    e("  s_mov_b32 s12, 0x3f80")
    e("  s_mov_b32 s13, 0x3f800000")

def gate_block():
    e("L_uc0:")
    for dd in range(4):
        e("  v_and_b32 v%d, %s, v%d" % (60 + 2 * dd, S_LO, 132 + dd))
        e("  v_and_b32 v%d, %s, v%d" % (61 + 2 * dd, S_M, 132 + dd))
    for rr in range(2):
        for dd in range(4):
            dot2(136 + 8 * rr + 2 * dd, v(124 + 4 * rr + dd), v(60 + 2 * dd))
            dot2(137 + 8 * rr + 2 * dd, v(124 + 4 * rr + dd), v(61 + 2 * dd))
    for rr in range(2):
        for dd in range(4):
            e("  v_cvt_pk_bf16_f32 v%d, v%d, v%d" % (152 + 4 * rr + dd, 136 + 8 * rr + 2 * dd, 137 + 8 * rr + 2 * dd))
    for dd in range(4):
        for rr in range(2):
            dot2(54 + rr, v(152 + 4 * rr + dd), S_ONES, "0" if dd == 0 else v(54 + rr))
    e("  s_nop 2")
    for sh in (1, 2, 4, 8):
        for rr in range(2):
            e("  v_add_f32_dpp v%d, v%d, v%d row_shr:%d row_mask:0xf bank_mask:0xf bound_ctrl:0" % (54 + rr, 54 + rr, 54 + rr, sh))
        e("  s_nop 0")
    for rr in range(2):
        e("  v_add_f32_dpp v%d, v%d, v%d row_bcast:15 row_mask:0xa bank_mask:0xf" % (54 + rr, 54 + rr, 54 + rr))
    e("  s_nop 0")
    for rr in range(2):
        e("  v_add_f32_dpp v%d, v%d, v%d row_bcast:31 row_mask:0xc bank_mask:0xf" % (54 + rr, 54 + rr, 54 + rr))
    e("  v_cvt_pk_bf16_f32 v56, v54, v55")
    e("  v_lshlrev_b32 v54, 16, v56")
    e("  v_and_b32 v55, %s, v56" % S_M)
    for rr in range(2):
        e("  v_mul_f32 v%d, 0x%08x, v%d" % (54 + rr, f2u(-1.4426950408889634), 54 + rr))
    for rr in range(2):
        e("  v_exp_f32 v%d, v%d" % (54 + rr, 54 + rr))
    e("  s_nop 0")
    for rr in range(2):
        e("  v_add_f32 v%d, 1.0, v%d" % (54 + rr, 54 + rr))
    for rr in range(2):
        e("  v_rcp_f32 v%d, v%d" % (54 + rr, 54 + rr))
    e("  s_nop 0")
    e("  v_cvt_pk_bf16_f32 v56, v54, v55")
    e("  v_lshlrev_b32 v54, 16, v56")
    e("  v_and_b32 v55, %s, v56" % S_M)
    e("  v_sub_f32 v56, 1.0, v54")
    e("  v_sub_f32 v57, 1.0, v55")
    e("  v_cvt_pk_bf16_f32 v58, v54, v56")
    e("  v_cvt_pk_bf16_f32 v59, v55, v57")
    chunk_end()
    e("  s_lshl_b32 s8, s35, 2")
    e("  s_add_u32 s8, s8, 0x%x" % WS_G)
    e("  v_mov_b32 v53, s8")
    e("  s_mov_b32 exec_lo, 0")
    e("  s_mov_b32 exec_hi, 0x80000000")
    e("  global_store_dwordx2 v53, v[58:59], s[52:53] sc1")
    e("  s_mov_b64 exec, -1")

def gen():
    e(".globl %s" % KN)
    e(".p2align 8")
    e(".type %s,@function" % KN)
    e("%s:" % KN)
    e("  s_cmp_ge_u32 s2, 256")
    e("  s_cbranch_scc1 L_end")
    stamp(0)
    e("  s_load_dwordx16 s[16:31], s[0:1], 0")
    e("  s_load_dwordx16 s[32:47], s[0:1], 64")
    e("  s_load_dwordx4 s[48:51], s[0:1], 128")
    e("  s_load_dwordx2 s[52:53], s[0:1], 144")
    if not NOPF:
        e("  s_getpc_b64 s[8:9]")
        e("L_pc:")
        e("  v_lshlrev_b32 v4, 4, v0")
        for c in range(NPF):
            e("  global_load_dwordx4 v[%d:%d], v4, s[8:9]" % (100 + 4 * c, 103 + 4 * c))
            if c < NPF - 1:
                e("  v_add_u32 v4, 8192, v4")
                e("  v_min_u32 v4, L_end-L_pc-16, v4")
    e("  v_lshrrev_b32 v4, 6, v0")
    e("  v_and_b32 v1, 63, v0")
    e("  v_readfirstlane_b32 s3, v4")
    e("  v_and_b32 v2, 15, v1")
    e("  v_lshrrev_b32 v3, 4, v1")
    e("  s_and_b32 s4, s2, 7")
    e("  s_lshr_b32 s5, s2, 3")
    e("  s_and_b32 s8, s3, 2")
    e("  s_and_b32 s9, s3, 1")
    e("  s_lshl_b32 s10, s5, 6")
    e("  s_lshl_b32 s8, s8, 4")
    e("  s_add_u32 s10, s10, s8")
    e("  s_lshl_b32 s11, s4, 6")
    e("  s_lshl_b32 s9, s9, 5")
    e("  s_add_u32 s11, s11, s9")
    e("  s_lshl_b32 s12, s10, 10")
    e("  s_lshl_b32 s13, s11, 1")
    e("  s_add_u32 s12, s12, s13")
    e("  v_lshlrev_b32 v5, 13, v3")
    e("  v_lshl_add_u32 v5, v2, 2, v5")
    e("  v_add_u32 v5, s12, v5")
    e("  v_add_u32 v6, 4096, v5")
    e("  s_lshl_b32 s6, s4, 6")
    e("  s_lshl_b32 s8, s5, 1")
    e("  s_add_u32 s6, s6, s8")
    e("  s_lshr_b32 s8, s3, 2")
    e("  s_add_u32 s8, s8, s6")
    e("  s_and_b32 s9, s3, 3")
    e("  s_lshl_b32 s12, s8, 8")
    e("  s_lshl_b32 s13, s9, 6")
    e("  s_add_u32 s12, s12, s13")
    e("  v_and_b32 v8, 31, v1")
    e("  v_lshlrev_b32 v8, 1, v8")
    e("  v_add_u32 v8, s12, v8")
    e("  s_lshl_b32 s13, s8, 1")
    e("  v_mov_b32 v9, s13")
    e("  v_subrev_u32 v7, 3072, v5")
    e("  s_lshl_b32 s13, s11, 3")
    e("  v_lshlrev_b32 v4, 4, v2")
    e("  v_add_u32 v4, s13, v4")
    e("  s_waitcnt lgkmcnt(0)")
    e("  s_cmp_ge_u32 s3, 4")
    e("  s_cbranch_scc1 L_uload")
    e("  s_mov_b32 s12, s36")
    e("  s_and_b32 s13, s37, 0xffff")
    e("  s_mov_b32 s14, 0x200000")
    e("  s_mov_b32 s15, 0x00020000")
    e("  global_load_dwordx4 v[30:33], v4, s[40:41]")
    for h in range(3):
        e("  buffer_load_dword v%d, v7, s[12:15], 0 offen offset:%d" % (10 + h, 1024 * h))
    for r in range(8):
        e("  buffer_load_dword v%d, v%d, s[12:15], 0 offen offset:%d" % (13 + r, 5 + (r >> 2), 1024 * (r & 3)))
    for r in range(8):
        e("  global_load_dword v%d, v%d, s[38:39] offset:%d" % (21 + r, 5 + (r >> 2), 1024 * (r & 3)))
    e("  s_lshl_b32 s8, s2, 7")
    e("  s_add_u32 s8, s8, 0x%x" % WS_MB)
    e("  v_mov_b32 v242, s8")
    e("  v_mov_b32 v243, 0")
    e("  global_load_dwordx2 v[240:241], v242, s[52:53] sc1")
    e("  global_load_ushort v238, v9, s[30:31]")
    for k in range(6):
        e("  global_load_ushort v%d, v8, s[%d:%d]" % (232 + k, 18 + 2 * k, 19 + 2 * k))
    e("  s_branch L_common")
    e("L_uload:")
    for r in range(8):
        e("  global_load_dword v%d, v%d, s[16:17] offset:%d" % (10 + r, 5 + (r >> 2), 1024 * (r & 3)))
    e("  global_load_ushort v238, v9, s[30:31]")
    for k in range(6):
        e("  global_load_ushort v%d, v8, s[%d:%d]" % (232 + k, 18 + 2 * k, 19 + 2 * k))
    e("  s_lshl_b32 s8, s2, 3")
    e("  s_lshl_b32 s12, s9, 1")
    e("  s_add_u32 s35, s8, s12")
    e("  s_lshl_b32 s8, s35, 10")
    e("  v_lshlrev_b32 v241, 4, v1")
    e("  v_add_u32 v243, s8, v241")
    e("  s_lshr_b32 s8, s9, 1")
    e("  s_add_u32 s8, s8, s6")
    e("  s_lshl_b32 s8, s8, 12")
    e("  s_and_b32 s12, s9, 1")
    e("  s_lshl_b32 s12, s12, 11")
    e("  s_add_u32 s8, s8, s12")
    e("  v_add_u32 v242, s8, v241")
    for r in range(4):
        e("  v_mov_b32 v%d, 0" % (44 + r))
    e("  v_mov_b32 v42, %d" % L_CNT)
    e("  ds_write_b128 v42, v[44:47]")
    e("  ds_write_b128 v42, v[44:47] offset:16")
    e("  s_mul_i32 s12, s9, %d" % KRW)
    e("  s_add_u32 s12, s12, %d" % L_K)
    e("  v_add_u32 v42, s12, v241")
    e("  s_mov_b64 exec, 0xf")
    e("  ds_write_b128 v42, v[44:47]")
    e("  s_mov_b64 exec, -1")
    e("  s_or_b32 s12, s9, 1")
    e("  s_mul_i32 s12, s12, %d" % KRW)
    e("  s_and_b32 s13, s9, 1")
    e("  s_lshl_b32 s13, s13, 11")
    e("  s_add_u32 s12, s12, s13")
    e("  s_add_u32 s12, s12, %d" % (L_K + 64))
    e("  v_add_u32 v240, s12, v241")
    e("L_common:")
    e("  s_bfe_u32 s8, s3, 0x10001")
    e("  s_add_u32 s8, s8, s6")
    e("  s_and_b32 s9, s3, 1")
    e("  s_lshl_b32 s8, s8, 12")
    e("  s_lshl_b32 s9, s9, 21")
    e("  s_add_u32 s9, s9, s8")
    e("  s_add_u32 s36, s52, s9")
    e("  s_addc_u32 s37, s53, 0")
    e("  s_and_b32 s37, s37, 0xffff")
    e("  s_mov_b32 s38, 4096")
    e("  s_mov_b32 s39, 0x00020000")
    e("  v_lshlrev_b32 v202, 4, v1")
    e("  v_add_u32 v203, 16, v202")
    e("  s_mov_b32 %s, 0xffff0000" % S_M)
    e("  s_mov_b32 %s, 0xffff" % S_LO)
    e("  s_mov_b32 %s, 0x3f803f80" % S_ONES)
    e("  s_mov_b32 %s, 0x05040100" % S_P0)
    e("  s_mov_b32 %s, 0x07060302" % S_P1)
    e("  s_mul_i32 s8, s3, %d" % TTW)
    e("  s_add_u32 s8, s8, %d" % L_TT)
    e("  v_mul_u32_u24 v4, 160, v2")
    e("  v_lshlrev_b32 v42, 4, v3")
    e("  v_sub_u32 v4, v4, v42")
    e("  v_add3_u32 v4, v4, s8, 48")
    e("  v_lshrrev_b32 v42, 2, v1")
    e("  v_and_b32 v43, 3, v1")
    e("  v_mul_u32_u24 v5, 80, v42")
    e("  v_lshl_add_u32 v5, v43, 4, v5")
    e("  v_add_u32 v5, s8, v5")
    e("  s_lshl_b32 s8, s11, 12")
    e("  s_sub_u32 s9, 2016, s10")
    e("  s_lshl_b32 s9, s9, 1")
    e("  s_add_u32 s8, s8, s9")
    e("  s_cmp_lt_u32 s3, 4")
    e("  s_cselect_b32 s9, 0x%x, 0" % WS_KVT)
    e("  s_add_u32 s8, s8, s9")
    e("  v_lshlrev_b32 v42, 12, v42")
    e("  v_lshl_add_u32 v42, v43, 4, v42")
    e("  v_add_u32 v6, s8, v42")
    e("  v_add_u32 v7, 0x10000, v6")
    e("  v_mov_b32 v217, %d" % L_PT)
    e("  s_waitcnt lgkmcnt(0)")
    e("  s_barrier")
    if not NOWARM:
        e("  s_cmp_ge_u32 s3, 4")
        e("  s_cbranch_scc1 L_uphase")
        e("  s_mov_b64 exec, 0")
        for wv, lab in enumerate(["L_kv0", "L_kv1", "L_kv2", "L_kv3"]):
            e("  s_cmp_eq_u32 s3, %d" % wv)
            e("  s_cbranch_scc1 %s" % lab)
    e("L_warm_ret:")
    e("  s_mov_b64 exec, -1")
    e("  s_cmp_ge_u32 s3, 4")
    e("  s_cbranch_scc1 L_uphase")

    e("  s_setprio 2")
    e("  s_waitcnt vmcnt(16)")
    stamp(1)
    e("L_kv0:")
    WL = [34, 35, 36, 37]; WH = [38, 39, 40, 41]
    e("  v_and_b32 v34, %s, v30" % S_LO)
    e("  v_lshrrev_b32 v35, 16, v30")
    e("  v_and_b32 v36, %s, v31" % S_LO)
    e("  v_lshrrev_b32 v37, 16, v31")
    e("  v_lshlrev_b32 v38, 16, v32")
    e("  v_and_b32 v39, %s, v32" % S_M)
    e("  v_lshlrev_b32 v40, 16, v33")
    e("  v_and_b32 v41, %s, v33" % S_M)
    def kvblock(R, labs):
        rows = range(4 * R, 4 * R + 4)
        A, B, C, D, T = 44, 52, 60, 68, 76
        ix = lambda r, c: 2 * (r & 3) + c
        for r in rows:
            for c in range(2):
                dot2(A + ix(r, c), v(10 + r), v((WL, WH)[c][3]))
                dot2(B + ix(r, c), v(10 + r + 1), v((WL, WH)[c][2]))
        for r in rows:
            for c in range(2):
                dot2(C + ix(r, c), v(10 + r + 2), v((WL, WH)[c][1]))
                e("  v_cvt_pk_bf16_f32 v%d, v%d, v%d" % (T + ix(r, c), A + ix(r, c), B + ix(r, c)))
        for r in rows:
            for c in range(2):
                dot2(D + ix(r, c), v(10 + r + 3), v((WL, WH)[c][0]))
                dot2(A + ix(r, c), v(T + ix(r, c)), S_ONES)
        chunk_end()
        e("%s:" % labs[0])
        for r in rows:
            for c in range(2):
                e("  v_cvt_pk_bf16_f32 v%d, v%d, v%d" % (T + ix(r, c), A + ix(r, c), C + ix(r, c)))
        for r in rows:
            for c in range(2):
                dot2(A + ix(r, c), v(T + ix(r, c)), S_ONES)
        for r in rows:
            for c in range(2):
                e("  v_cvt_pk_bf16_f32 v%d, v%d, v%d" % (T + ix(r, c), A + ix(r, c), D + ix(r, c)))
        for r in rows:
            for c in range(2):
                dot2(A + ix(r, c), v(T + ix(r, c)), S_ONES)
        if R == 0:
            e("  s_cbranch_execz L_kvskipw")
            e("  s_waitcnt vmcnt(8)")
            e("L_kvskipw:")
        for r in rows:
            e("  v_and_b32 v%d, %s, v%d" % (B + ix(r, 0), S_LO, 21 + r))
            e("  v_and_b32 v%d, %s, v%d" % (B + ix(r, 1), S_M, 21 + r))
        for r in rows:
            e("  v_cvt_pk_bf16_f32 v%d, v%d, v%d" % (T + (r & 3), A + ix(r, 0), A + ix(r, 1)))
        for r in rows:
            for c in range(2):
                dot2(C + ix(r, c), v(T + (r & 3)), v(B + ix(r, c)))
        e("  s_nop 1")
        for r in rows:
            e("  v_cvt_pk_bf16_f32 v%d, v%d, v%d" % (88 + r, C + ix(r, 0), C + ix(r, 1)))
        chunk_end()
        if labs[1]:
            e("%s:" % labs[1])
    kvblock(0, ["L_kv1", "L_kv2"])
    kvblock(1, ["L_kv3", None])
    for m in range(4):
        e("  v_perm_b32 v%d, v%d, v%d, %s" % (44 + m, 88 + 6 - 2 * m, 88 + 7 - 2 * m, S_P0))
        e("  v_perm_b32 v%d, v%d, v%d, %s" % (48 + m, 88 + 6 - 2 * m, 88 + 7 - 2 * m, S_P1))
    e("  ds_write_b128 v4, v[44:47]")
    e("  ds_write_b128 v4, v[48:51] offset:80")
    e("  ds_read_b128 v[52:55], v5")
    e("  ds_read_b128 v[56:59], v5 offset:1280")
    e("  s_waitcnt vmcnt(7)")
    e("  v_add_u32 v240, 1, v240")
    e("  v_add_u32 v241, 8, v241")
    e("  v_mov_b32 v10, %d" % (L_CNT + 8))
    e("  ds_write_b32 v10, v241")
    e("  s_waitcnt lgkmcnt(2)")
    e("  global_store_dwordx4 v6, v[52:55], s[52:53] sc1")
    e("  s_waitcnt lgkmcnt(1)")
    e("  global_store_dwordx4 v7, v[56:59], s[52:53] sc1")
    e("  s_setprio 0")
    stamp(2)
    e("  s_mul_i32 s8, s3, %d" % KRW)
    e("  s_add_u32 s8, s8, %d" % (L_K + 4))
    e("  v_lshlrev_b32 v192, 2, v2")
    e("  v_lshl_add_u32 v192, v3, 4, v192")
    e("  v_add_u32 v192, s8, v192")
    for sp in range(1, 8):
        e("  v_add_u32 v%d, %d, v192" % (192 + sp, 512 * sp))
    e("  s_mul_i32 s8, s3, %d" % RW)
    e("  s_add_u32 s8, s8, %d" % L_U)
    e("  v_and_b32 v42, 1, v2")
    e("  v_lshrrev_b32 v43, 1, v2")
    e("  v_sub_u32 v42, 1, v42")
    e("  v_mul_u32_u24 v42, %d, v42" % CPY)
    e("  v_lshlrev_b32 v43, 6, v43")
    e("  v_sub_u32 v42, v42, v43")
    e("  v_lshl_add_u32 v42, v3, 4, v42")
    e("  v_add_u32 v42, 448, v42")
    e("  v_add_u32 v201, s8, v42")
    e("  v_lshlrev_b32 v202, 4, v1")
    e("  v_add_u32 v200, s8, v202")
    for r in range(160, 192):
        e("  v_mov_b32 v%d, 0" % r)
    e("  v_cmp_gt_u32 vcc, 28, v1")
    e("  s_and_saveexec_b64 s[18:19], vcc")
    e("  ds_write_b128 v200, v[160:163] offset:%d" % 4096)
    e("  ds_write_b128 v200, v[160:163] offset:%d" % (4096 + CPY))
    e("  s_mov_b64 exec, s[18:19]")
    e("  s_branch L_kgen")

    e("L_uphase:")
    e("  s_setprio 2")
    e("  s_waitcnt vmcnt(7)")
    stamp(1)
    for m in range(4):
        e("  v_perm_b32 v%d, v%d, v%d, %s" % (44 + m, 10 + 6 - 2 * m, 10 + 7 - 2 * m, S_P0))
        e("  v_perm_b32 v%d, v%d, v%d, %s" % (48 + m, 10 + 6 - 2 * m, 10 + 7 - 2 * m, S_P1))
    e("  ds_write_b128 v4, v[44:47]")
    e("  ds_write_b128 v4, v[48:51] offset:80")
    e("  ds_read_b128 v[52:55], v5")
    e("  ds_read_b128 v[56:59], v5 offset:1280")
    e("  s_waitcnt lgkmcnt(1)")
    e("  global_store_dwordx4 v6, v[52:55], s[52:53] sc1")
    e("  s_waitcnt lgkmcnt(0)")
    e("  global_store_dwordx4 v7, v[56:59], s[52:53] sc1")
    e("  global_load_dwordx4 v[124:127], v243, s[16:17]")
    e("  global_load_dwordx4 v[128:131], v243, s[16:17] offset:1024")
    e("  global_load_dwordx4 v[132:135], v241, s[46:47]")
    e("  global_load_dwordx4 v[244:247], v242, s[42:43]")
    e("  global_load_dwordx4 v[248:251], v242, s[42:43] offset:1024")
    e("  s_setprio 0")
    stamp(2)

    e("L_kgen:")
    for r in range(220, 232):
        e("  v_mov_b32 v%d, 0" % r)
    e("  v_lshrrev_b32 v42, 3, v2")
    e("  v_and_b32 v43, 7, v2")
    e("  v_lshl_add_u32 v42, v42, 7, v43")
    e("  v_cvt_f32_u32 v208, v42")
    e("  v_lshrrev_b32 v42, 2, v2")
    e("  v_and_b32 v43, 3, v2")
    e("  v_lshlrev_b32 v43, 1, v43")
    e("  v_lshl_add_u32 v42, v42, 7, v43")
    e("  v_add_u32 v42, 256, v42")
    e("  v_lshrrev_b32 v44, 1, v2")
    e("  v_and_b32 v43, 1, v2")
    e("  v_lshlrev_b32 v43, 2, v43")
    e("  v_cmp_gt_u32 vcc, 8, v2")
    e("  v_lshl_add_u32 v44, v44, 7, v43")
    e("  v_lshlrev_b32 v45, 7, v2")
    e("  v_cndmask_b32 v42, v44, v42, vcc")
    e("  v_cvt_f32_u32 v209, v42")
    e("  v_add_u32 v45, 1024, v45")
    e("  v_cvt_f32_u32 v210, v45")
    e("  v_lshlrev_b32 v42, 3, v2")
    e("  v_cvt_f32_u32 v211, v42")
    e("  s_mul_i32 s12, s3, 3072")
    e("  v_mov_b32 v46, s12")
    e("  v_lshrrev_b32 v42, 1, v3")
    e("  v_and_b32 v43, 1, v3")
    e("  v_lshlrev_b32 v43, 2, v43")
    e("  v_lshl_add_u32 v42, v42, 7, v43")
    e("  v_lshl_add_u32 v42, v2, 3, v42")
    e("  v_lshl_add_u32 v204, v42, 2, v46")
    e("  v_lshlrev_b32 v42, 6, v3")
    e("  v_add_u32 v42, 256, v42")
    e("  v_lshl_add_u32 v43, v2, 2, v42")
    e("  v_lshl_add_u32 v44, v2, 1, v42")
    e("  v_cmp_gt_u32 vcc, 2, v3")
    e("  v_add_u32 v45, 2, v43")
    e("  v_add_u32 v47, 32, v44")
    e("  v_cndmask_b32 v43, v44, v43, vcc")
    e("  v_cndmask_b32 v45, v47, v45, vcc")
    e("  v_lshl_add_u32 v205, v43, 2, v46")
    e("  v_lshl_add_u32 v206, v45, 2, v46")
    e("  v_lshlrev_b32 v42, 6, v3")
    e("  v_add3_u32 v42, v42, v2, 0")
    e("  v_add_u32 v42, 512, v42")
    e("  v_lshl_add_u32 v207, v42, 2, v46")
    e("  s_lshl_b32 s12, s3, 9")
    e("  s_add_u32 s12, s12, %d" % L_PT)
    e("  v_and_b32 v42, 31, v1")
    e("  v_lshlrev_b32 v42, 4, v42")
    e("  v_add_u32 v216, s12, v42")
    e("  v_lshlrev_b32 v42, 6, v3")
    e("  v_add_u32 v217, s12, v42")
    e("  v_lshrrev_b32 v41, 8, v0")
    e("  v_and_b32 v40, 255, v0")
    e("  v_mul_u32_u24 v42, 12288, v41")
    e("  v_lshlrev_b32 v43, 3, v40")
    e("  v_cmp_gt_u32 vcc, 16, v40")
    for ee in range(0, 8, 2):
        e("  v_add_u32 v44, %d, v43" % ee)
        e("  v_add_u32 v45, %d, v43" % (ee + 1))
        e("  v_cvt_f32_u32 v46, v44")
        e("  v_cvt_f32_u32 v47, v45")
        e("  v_cvt_pk_bf16_f32 v46, v46, v47")
        e("  v_and_b32 v47, %s, v46" % S_LO)
        e("  v_lshrrev_b32 v46, 16, v46")
        e("  v_subrev_u32 v47, 17024, v47")
        e("  v_subrev_u32 v46, 17024, v46")
        e("  v_cndmask_b32 v47, v47, v44, vcc")
        e("  v_cndmask_b32 v46, v46, v45, vcc")
        e("  v_lshl_add_u32 v%d, v47, 2, v42" % (116 + ee))
        e("  v_lshl_add_u32 v%d, v46, 2, v42" % (117 + ee))
    e("  v_mul_u32_u24 v44, %d, v41" % (2 * KRW))
    e("  v_lshl_add_u32 v44, v40, 4, v44")
    e("  v_add_u32 v219, %d, v44" % (L_K + 64))
    e("  s_waitcnt vmcnt(7)")
    e("  s_cmp_ge_u32 s3, 4")
    e("  s_cbranch_scc1 L_kp")
    e("  s_waitcnt vmcnt(2)")
    L2E = 1.4426950408889634
    L2E_HI = struct.unpack("<f", struct.pack("<I", f2u(L2E) & 0xFFFFFF00))[0]
    L2E_LO = L2E - L2E_HI
    e("L_kp:")
    for k in range(7):
        e("  v_lshlrev_b32 v%d, 16, v%d" % (232 + k, 232 + k))
    e("  v_mul_f32 v42, 0x%08x, v238" % f2u(L2E_HI))
    e("  v_mul_f32 v43, 0x%08x, v238" % f2u(L2E_LO * math.log(2.0)))
    e("  v_exp_f32 v42, v42")
    e("  s_nop 0")
    e("  v_fma_f32 v42, v42, v43, v42")
    e("  v_cvt_pk_bf16_f32 v42, v42, v42")
    e("  v_lshlrev_b32 v44, 16, v42")
    e("  v_mul_f32 v42, 0x%08x, v44" % f2u(L2E))
    e("  v_mul_f32 v43, 0x%08x, v44" % f2u(1.0 / (2.0 * math.pi)))
    e("  v_pk_mul_f32 v[232:233], v[232:233], v[42:43]")
    e("  v_pk_mul_f32 v[46:47], v[234:235], v[44:45] op_sel:[0,0] op_sel_hi:[1,0]")
    e("  v_pk_mul_f32 v[48:49], v[236:237], v[46:47] op_sel:[0,0] op_sel_hi:[0,1]")
    e("  v_pk_fma_f32 v[234:235], v[236:237], v[46:47], v[48:49] op_sel:[1,1,0] op_sel_hi:[1,0,1] neg_lo:[1,0,0]")
    e("  v_max_f32 v50, |v234|, |v235|")
    e("  s_nop 1")
    for sh in (1, 2, 4, 8):
        e("  v_max_f32_dpp v50, v50, v50 row_shr:%d row_mask:0xf bank_mask:0xf bound_ctrl:0" % sh)
        e("  s_nop 1")
    e("  v_max_f32_dpp v50, v50, v50 row_bcast:15 row_mask:0xa bank_mask:0xf")
    e("  s_nop 1")
    e("  v_readlane_b32 s12, v50, 31")
    e("  s_nop 1")
    e("  v_mov_b32 v50, s12")
    e("  v_frexp_exp_i32_f32 v50, v50")
    e("  v_sub_u32 v51, 0, v50")
    e("  v_ldexp_f32 v218, 1.0, v50")
    e("  v_ldexp_f32 v234, v234, v51")
    e("  v_ldexp_f32 v235, v235, v51")
    e("  ds_write_b128 v216, v[232:235]")
    e("  s_mov_b32 s59, 0")
    e("  s_mov_b32 s34, 0")
    e("  v_mov_b32 v48, %d" % L_CNT)
    e("  v_mov_b32 v49, 1")
    grp_off(50, 0)
    e("  s_waitcnt vmcnt(5)")
    e("  s_cmp_ge_u32 s3, 4")
    e("  s_cbranch_scc1 L_arr0")
    e("  s_waitcnt vmcnt(0)")
    e("L_arr0:")
    stamp(3)
    e("  s_mov_b64 exec, 1")
    e("  ds_add_rtn_u32 v52, v48, v49")
    e("  s_waitcnt lgkmcnt(0)")
    e("  v_cmp_eq_u32 vcc, 7, v52")
    e("  s_and_b64 exec, exec, vcc")
    e("  s_cbranch_execz L_arr1")
    e("  global_atomic_add v51, v50, v49, s[50:51] sc0 sc1")
    e("  s_mov_b32 s34, 1")
    e("L_arr1:")
    e("  s_mov_b64 exec, -1")
    e("L_kstart:")
    e("  ds_read_b128 v[40:43], v217")
    e("L_kloop:")
    A0, B0 = 100, 112
    for mm in range(4):
        P = 40 + 4 * (mm & 1)
        Z, CB = P, P + 2
        e("  s_waitcnt lgkmcnt(0)")
        if mm in (0, 2):
            e("L_kb%d:" % mm)
        nxt = (mm + 1) * 16 if mm < 3 else 256
        e("  ds_read_b128 %s, v217 offset:%d" % (quad(40 + 4 * ((mm + 1) & 1)), nxt))
        lam = [("v[208:209]", 0), ("v[208:209]", 1), ("v[210:211]", 0), ("v[210:211]", 1)]
        for a in range(4):
            l, h = lam[a]
            e("  v_pk_mul_f32 %s, %s, %s op_sel:[0,%d] op_sel_hi:[1,%d]" % (pair(92 + 2 * a), pair(Z), l, h, h))
        for a in range(4):
            e("  v_fract_f32 v%d, v%d" % (24 + a, 93 + 2 * a))
        for a in range(4):
            e("  v_exp_f32 v%d, v%d" % (16 + 2 * a, 92 + 2 * a))
            e("  v_cos_f32 v%d, v%d" % (8 + 2 * a, 24 + a))
            e("  v_sin_f32 v%d, v%d" % (9 + 2 * a, 24 + a))
        e("  s_nop 0")
        for a in range(4):
            e("  v_pk_mul_f32 %s, %s, %s op_sel:[0,0] op_sel_hi:[1,0]" % (pair(76 + 2 * a), pair(8 + 2 * a), pair(16 + 2 * a)))
        e("  v_pk_mul_f32 v[30:31], v[82:83], %s op_sel:[0,0] op_sel_hi:[0,1]" % pair(CB))
        for a in range(3):
            e("  v_cvt_pk_f16_f32 v%d, v%d, v%d" % (A0 + 4 * a + mm, 76 + 2 * a, 77 + 2 * a))
        e("  v_pk_fma_f32 v[30:31], v[82:83], %s, v[30:31] op_sel:[1,1,0] op_sel_hi:[1,0,1] neg_lo:[1,0,0] neg_hi:[1,0,1]" % pair(CB))
        e("  v_cvt_pk_f16_f32 v%d, v30, v31" % (B0 + mm))
        if mm in (1, 3):
            chunk_end()
        if mm == 1:
            e("  s_cmp_eq_u32 s34, 0")
            e("  s_cbranch_scc1 L_skip_arr2")
            e("  s_mov_b32 s34, 0")
            e("  s_waitcnt vmcnt(0)")
            e("  s_mov_b64 exec, 1")
            e("  v_and_b32 v51, 31, v51")
            e("  v_cmp_eq_u32 vcc, 31, v51")
            e("  s_and_b64 exec, exec, vcc")
            e("  s_cbranch_execz L_arr_done")
            e("  s_mov_b64 exec, 0xffffffff")
            e("  v_lshlrev_b32 v52, 10, v1")
            e("  s_lshl_b32 s8, s4, 7")
            e("  s_add_u32 s8, s8, 0x%x" % WS_MB)
            e("  v_add_u32 v52, s8, v52")
            e("  global_atomic_add v52, v49, s[52:53] sc1")
            e("L_arr_done:")
            e("  s_mov_b64 exec, -1")
            e("L_skip_arr2:")
    e("  v_add_u32 v217, 256, v217")
    e("  s_nop 0")
    for t in range(3):
        e("  v_mfma_f32_16x16x32_f16 %s, %s, %s, %s" % (quad(220 + 4 * t), quad(A0 + 4 * t), quad(B0), quad(220 + 4 * t)))
    e("  s_cmp_lg_u32 s59, 0")
    e("  s_cbranch_scc1 L_kdone")
    e("  s_mov_b32 s59, 1")
    e("  s_branch L_kloop")
    e("L_kdone:")
    stamp(4)
    for r in range(12):
        e("  v_mul_f32 v%d, v218, v%d" % (220 + r, 220 + r))
    e("  ds_write_b128 v204, v[220:223]")
    e("  ds_write_b64 v205, v[224:225]")
    e("  ds_write_b64 v206, v[226:227]")
    for r in range(4):
        e("  ds_write_b32 v207, v%d offset:%d" % (228 + r, 64 * r))
    e("  s_cmp_lt_u32 s3, 4")
    e("  s_cbranch_scc1 L_nossm")
    e("  s_waitcnt vmcnt(0)")
    e("  ds_write_b128 v240, v[244:247]")
    e("  ds_write_b128 v240, v[248:251] offset:1024")
    e("L_nossm:")
    e("  s_waitcnt lgkmcnt(0)")
    e("  s_barrier")
    for ee in range(8):
        e("  ds_read2st64_b32 %s, v%d offset0:0 offset1:12" % (pair(48 + 4 * ee), 116 + ee))
        e("  ds_read2st64_b32 %s, v%d offset0:24 offset1:36" % (pair(50 + 4 * ee), 116 + ee))
    e("  s_lshl_b32 s8, s6, 1")
    e("  v_mov_b32 v7, s8")
    e("  global_load_dword v252, v7, s[32:33]")
    e("  global_load_dword v253, v7, s[44:45]")
    for p in range(4):
        e("  s_waitcnt lgkmcnt(%d)" % (12 - 4 * p))
        for h in range(2):
            b = 48 + 8 * p + 4 * h
            e("  v_pk_add_f32 %s, %s, %s" % (pair(b), pair(b), pair(b + 2)))
        for h in range(2):
            b = 48 + 8 * p + 4 * h
            e("  v_add_f32 v%d, v%d, v%d" % (b, b, b + 1))
        e("  v_cvt_pk_bf16_f32 v%d, v%d, v%d" % (84 + p, 48 + 8 * p, 52 + 8 * p))
    e("  ds_write_b128 v219, v[84:87]")
    e("  s_cmp_ge_u32 s3, 4")
    e("  s_cbranch_scc1 L_upost")

    poll("L_pollT", 242, 240)
    stamp(5)
    for k in range(4):
        e("  buffer_load_dwordx4 %s, v202, s[36:39], 0 offen offset:%d sc1" % (quad(8 + 4 * k), 1024 * k))
    for k in range(4):
        e("  buffer_load_dword v%d, v203, s[36:39], 0 offen offset:%d sc1" % (24 + k, 1024 * k))
    e("  s_waitcnt lgkmcnt(0)")
    e("  s_barrier")
    def kreg(st, sp):
        return 32 + 64 * st + 4 * sp
    def ureg(st, bp):
        return 32 + 64 * st + 32 + 4 * bp
    def kloads(rc, n, st):
        ins = []
        for sp in range(n):
            ins.append("  ds_read2_b32 %s, v%d offset0:%d offset1:%d" % (pair(kreg(st, sp)), 192 + sp, 16 * rc, 16 * rc + 1))
            ins.append("  ds_read2_b32 %s, v%d offset0:%d offset1:%d" % (pair(kreg(st, sp) + 2), 192 + sp, 16 * rc + 2, 16 * rc + 3))
        return ins
    def uloads(rc, n, st):
        ins = []
        for bp in range(n):
            beta = 8 * bp - rc
            ins.append("  ds_read_b128 %s, v201 offset:%d" % (quad(ureg(st, bp)), 3584 - 64 * beta))
        return ins
    stages = [(0, rc) for rc in range(8)] + ([(1, rc) for rc in range(8)] if TA < 8 else [])
    def nfr(ps):
        return TA if ps == 0 else 8
    for x in kloads(0, TA, 0):
        e(x)
    for k in range(4):
        b = 8 + 4 * k
        e("  s_waitcnt vmcnt(%d)" % (3 - k))
        e("  ds_write_b128 v200, %s offset:%d" % (quad(b), 1024 * k))
        e("  v_alignbit_b32 v28, v%d, v%d, 16" % (b + 1, b))
        e("  v_alignbit_b32 v29, v%d, v%d, 16" % (b + 2, b + 1))
        e("  v_alignbit_b32 v30, v%d, v%d, 16" % (b + 3, b + 2))
        e("  v_alignbit_b32 v31, v%d, v%d, 16" % (24 + k, b + 3))
        e("  ds_write_b128 v200, v[28:31] offset:%d" % (1024 * k + CPY))
        e("  s_nop 1")
    stamp(6)
    for x in uloads(0, TA, 0):
        e(x)
    e("  s_lshl_b32 s8, s3, 12")
    e("  s_add_u32 s8, s8, %d" % L_Y)
    e("  v_lshlrev_b32 v5, 7, v3")
    e("  v_lshl_add_u32 v5, v2, 2, v5")
    e("  v_add_u32 v5, s8, v5")
    e("  v_mov_b32 v6, %d" % (L_CNT + 4))
    e("  v_mov_b32 v7, 1")
    def ywrite(tiles):
        ins = []
        for t in tiles:
            a = 160 + 4 * t
            ins.append("  v_cvt_pk_bf16_f32 v%d, v%d, v%d" % (8 + 2 * t, a, a + 1))
            ins.append("  v_cvt_pk_bf16_f32 v%d, v%d, v%d" % (9 + 2 * t, a + 2, a + 3))
            ins.append("  ds_write_b32 v5, v%d offset:%d" % (8 + 2 * t, 512 * t))
            ins.append("  ds_write_b32 v5, v%d offset:%d" % (9 + 2 * t, 512 * t + 64))
        return ins
    for si, (ps, rc) in enumerate(stages):
        st = si & 1
        e("  s_waitcnt lgkmcnt(0)")
        mf = []
        for sp in range(8):
            for bp in range(8 - sp):
                t = sp + bp
                if (t < TA) == (ps == 0):
                    mf.append("  v_mfma_f32_16x16x32_bf16 %s, %s, %s, %s" % (quad(160 + 4 * t), quad(ureg(st, bp)), quad(kreg(st, sp)), quad(160 + 4 * t)))
        nl = []
        if si + 1 < len(stages):
            ps2, rc2 = stages[si + 1]
            n = nfr(ps2)
            kl, ul = kloads(rc2, n, st ^ 1), uloads(rc2, n, st ^ 1)
            for i in range(n):
                nl += [kl[2 * i], kl[2 * i + 1], ul[i]]
        extra = []
        if (ps, rc) == (1, 0):
            extra = ywrite(range(TA))
        per = max(1, -(-len(nl) // len(mf)))
        li = 0
        for i, x in enumerate(mf):
            e(x)
            for _ in range(per):
                if li < len(nl):
                    e(nl[li]); li += 1
            if i >= 4 and extra:
                for _ in range(2):
                    if extra:
                        e(extra.pop(0))
        while li < len(nl):
            e(nl[li]); li += 1
        for x in extra:
            e(x)
        if (ps, rc) == (1, 1):
            pass
        if (ps, rc) == (1, 0):
            L.append("@PUBLISH")
    if TA < 8:
        idx = L.index("@PUBLISH")
        assert L[idx + 1].strip() == "s_waitcnt lgkmcnt(0)"
        L[idx:idx + 2] = ["  s_waitcnt lgkmcnt(0)", "  s_mov_b64 exec, 1", "  ds_add_u32 v6, v7", "  s_mov_b64 exec, -1"]
    e("  s_nop 7")
    stamp(7)
    for x in ywrite(range(TA, 8) if TA < 8 else range(8)):
        e(x)
    e("  s_waitcnt vmcnt(0)")
    dsel()
    e("  s_branch L_final")

    e("L_upost:")
    e("  s_waitcnt lgkmcnt(0)")
    e("  s_barrier")
    stamp(5)
    gate_block()
    e("  v_mov_b32 v48, %d" % (L_CNT + 16))
    e("  v_mov_b32 v49, 1")
    grp_off(50, 4)
    e("  s_waitcnt vmcnt(0)")
    e("  s_mov_b64 exec, 1")
    e("  ds_add_rtn_u32 v52, v48, v49")
    e("  s_waitcnt lgkmcnt(0)")
    e("  v_cmp_eq_u32 vcc, 3, v52")
    e("  s_and_b64 exec, exec, vcc")
    e("  s_cbranch_execz L_garr_done")
    e("  global_atomic_add v53, v50, v49, s[50:51] sc0 sc1")
    e("  s_waitcnt vmcnt(0)")
    e("  v_and_b32 v53, 31, v53")
    e("  v_cmp_eq_u32 vcc, 31, v53")
    e("  s_and_b64 exec, exec, vcc")
    e("  s_cbranch_execz L_garr_done")
    e("  s_mov_b64 exec, -1")
    e("  v_lshlrev_b32 v52, 7, v1")
    e("  v_add_u32 v52, 0x%x, v52" % (WS_MB + 4))
    for c in range(4):
        e("  global_atomic_add v52, v49, s[52:53] sc1")
        if c < 3:
            e("  v_add_u32 v52, 8192, v52")
    e("L_garr_done:")
    e("  s_mov_b64 exec, -1")
    e("  s_cmp_lg_u32 s3, 4")
    e("  s_cbranch_scc1 L_uwait")
    e("  v_mov_b32 v10, %d" % (L_CNT + 8))
    e("  ds_read_b32 v11, v10")
    e("  s_lshl_b32 s8, s2, 7")
    e("  s_add_u32 s8, s8, 0x%x" % (WS_MB + 4))
    e("  v_mov_b32 v10, s8")
    e("  s_waitcnt lgkmcnt(0)")
    poll("L_pollG", 10, 11)
    e("  v_lshlrev_b32 v40, 4, v1")
    e("  v_add_u32 v41, 0x%x, v40" % WS_G)
    e("  v_add_u32 v42, 4096, v41")
    for c in range(8):
        e("  global_load_dwordx4 %s, v%d, s[52:53] offset:%d sc1" % (quad(72 + 4 * c), 41 + (c >> 2), 1024 * (c & 3)))
    for c in range(8):
        e("  s_waitcnt vmcnt(%d)" % (7 - c))
        e("  ds_write_b128 v40, %s offset:%d" % (quad(72 + 4 * c), L_G + 1024 * c))
    e("  v_mov_b32 v10, %d" % (L_CNT + 12))
    e("  v_mov_b32 v11, 1")
    e("  s_waitcnt lgkmcnt(0)")
    e("  ds_write_b32 v10, v11")
    stamp(6)
    e("L_uwait:")
    e("  s_waitcnt vmcnt(0)")
    dsel()
    if TA < 8:
        e("  v_mov_b32 v10, %d" % L_CNT)
        e("  s_mov_b32 s58, 0")
        e("L_lspin:")
        e("  ds_read_b128 v[12:15], v10")
        e("  s_waitcnt lgkmcnt(0)")
        e("  v_lshl_add_u32 v12, v15, 4, v13")
        e("  v_cmp_ne_u32 vcc, 20, v12")
        e("  s_add_u32 s58, s58, 1")
        e("  s_cmp_ge_u32 s58, %d" % (SPIN_MAX * 4))
        e("  s_cbranch_scc1 L_lspin_done")
        e("  s_cbranch_vccz L_lspin_done")
        e("  s_sleep 4")
        e("  s_branch L_lspin")
        e("L_lspin_done:")
        e("  v_subrev_u32 v254, 256, v0")
        if TA == 4:
            combine(4, 254, 0)
        else:
            raise SystemExit("TA != 4 unsupported in combine split for now")
    stamp(7)

    e("L_final:")
    e("  s_waitcnt lgkmcnt(0)")
    e("  s_barrier")
    stamp(8)
    if TA < 8:
        combine(2, 0, 1024)
    else:
        combine(4, 0, 0)
    stamp(9)
    stamp_flush(10)
    e("L_end:")
    e("  s_endpgm")

def main():
    e(HEADER.rstrip("\n"))
    e("; @launch grid=(256,1,1) block=(512,1,1) lds=%d" % LDS_TOTAL)
    e('.amdgcn_target "amdgcn-amd-amdhsa--gfx950"')
    e(".text")
    gen()
    e('.section .rodata,"a"')
    e(".p2align 6")
    e(".amdhsa_kernel %s" % KN)
    e("  .amdhsa_next_free_vgpr 256")
    e("  .amdhsa_next_free_sgpr 102")
    e("  .amdhsa_accum_offset 256")
    e("  .amdhsa_group_segment_fixed_size 0")
    e("  .amdhsa_kernarg_size 152")
    e("  .amdhsa_user_sgpr_count 2")
    e("  .amdhsa_user_sgpr_kernarg_segment_ptr 1")
    e("  .amdhsa_system_sgpr_workgroup_id_x 1")
    e(".end_amdhsa_kernel")
    args = [a for a in sys.argv[1:] if not a.startswith("--")]
    open(args[0] if args else OUT, "w").write("\n".join(L) + "\n")

main()
```

```python
import struct, sys, math

NAME = "gated_mix__ssm_conv_s4__ssm_conv_h3__prompt"
OUT = "cdna_kernels/%s.s" % NAME
KN = NAME + "_kernel"

def f2u(x):
    return struct.unpack("<I", struct.pack("<f", x))[0]

L = []
def e(s=""):
    L.append(s)

STAMP = "--stamp" in sys.argv
NOWARM = "--nowarm" in sys.argv
NOPF = "--nopf" in sys.argv
TA = 4
for a in sys.argv:
    if a.startswith("--ta="):
        TA = int(a[5:])
NPF = 2
WS_UT, WS_KVT, WS_G, WS_MB, WS_ST = 0x000000, 0x200000, 0x600000, 0x700000, 0x800000

def stamp(i):
    if STAMP:
        e("  s_memrealtime s[%d:%d]" % (60 + 2 * i, 61 + 2 * i))
        e("  s_memtime s[%d:%d]" % (80 + 2 * i, 81 + 2 * i))
def stamp_flush(n):
    if not STAMP:
        return
    e("  s_waitcnt vmcnt(0) lgkmcnt(0)")
    e("  s_mov_b64 exec, 1")
    e("  v_lshrrev_b32 v124, 6, v0")
    e("  v_lshlrev_b32 v124, 8, v124")
    e("  s_lshl_b32 s100, s2, 11")
    e("  s_add_u32 s100, s100, 0x%x" % WS_ST)
    e("  v_add_u32 v124, s100, v124")
    for i in range(n):
        e("  v_mov_b32 v126, s%d" % (60 + 2 * i))
        e("  v_mov_b32 v127, s%d" % (61 + 2 * i))
        e("  global_store_dwordx2 v124, v[126:127], s[52:53] offset:%d" % (8 * i))
        e("  s_nop 1")
        e("  v_mov_b32 v126, s%d" % (80 + 2 * i))
        e("  v_mov_b32 v127, s%d" % (81 + 2 * i))
        e("  global_store_dwordx2 v124, v[126:127], s[52:53] offset:%d" % (128 + 8 * i))
        e("  s_nop 1")

HEADER = open("cdna_kernels/%s.s.ref" % NAME).read().split("; Override launch")[0]

def pair(r):
    return "v[%d:%d]" % (r, r + 1)
def quad(r):
    return "v[%d:%d]" % (r, r + 3)
def v(r):
    return "v%d" % r

S_M, S_LO, S_ONES, S_P0, S_P1 = "s7", "s54", "s55", "s56", "s57"

CPY = 4640
RW = 9216
KRW = 4224
L_TAB = 0
L_CNT = 24576
L_PT = 24704
L_G = L_PT + 4096
L_Y = L_G + 8192
L_U = L_Y + 4 * 4096
L_K = L_U + 4 * RW
LDS_TOTAL = L_K + 4 * KRW
L_TT = L_G
TTW = 2560
SPIN_MAX = 1 << 18

def dot2(d, a, b, c="0"):
    e("  v_dot2_f32_bf16 v%d, %s, %s, %s" % (d, a, b, c))

def poll(label, off_reg, want_reg, data=(9, 14, 15, 16)):
    e("  s_mov_b32 s58, 0")
    e("  s_mov_b64 exec, 1")
    for d in data[:3]:
        e("  global_load_dword v%d, v%d, s[52:53] sc1" % (d, off_reg))
        e("  s_sleep 1")
    e("%s:" % label)
    for i in range(4):
        e("  global_load_dword v%d, v%d, s[52:53] sc1" % (data[(i + 3) % 4], off_reg))
        e("  s_waitcnt vmcnt(3)")
        e("  v_cmp_ne_u32 vcc, v%d, v%d" % (want_reg, data[i]))
        e("  s_add_u32 s58, s58, 1")
        e("  s_nop 0")
        e("  s_cbranch_vccz %s_done" % label)
        e("  s_sleep 1")
    e("  s_cmp_lt_u32 s58, %d" % SPIN_MAX)
    e("  s_cbranch_scc1 %s" % label)
    e("%s_done:" % label)
    e("  s_waitcnt vmcnt(0)")
    e("  s_mov_b64 exec, -1")

def chunk_end():
    e("  s_cbranch_execz L_warm_ret")

def grp_off(dst, extra):
    e("  s_lshr_b32 s8, s4, 1")
    e("  s_lshl_b32 s8, s8, 6")
    e("  s_and_b32 s9, s4, 1")
    e("  s_lshl_b32 s9, s9, 4")
    e("  s_add_u32 s8, s8, s9")
    if extra:
        e("  s_add_u32 s8, s8, %d" % extra)
    e("  v_mov_b32 v%d, s8" % dst)

def combine(nl, tidreg, lbase):
    sh = {4: 3, 2: 2}[nl]
    e("  v_lshlrev_b32 v5, %d, v%d" % (sh, tidreg))
    e("  v_sub_u32 v6, %d, v5" % (L_U + 4096 - 2 * lbase - 2 * nl))
    e("  v_lshlrev_b32 v4, %d, v%d" % (sh + 1, tidreg))
    e("  v_lshlrev_b32 v7, %d, v%d" % (sh + 9, tidreg))
    e("  s_lshl_b32 s8, s6, 1")
    e("  s_add_u32 s8, s8, %d" % (lbase * 1024))
    e("  v_add_u32 v7, s8, v7")
    rd = "ds_read_b64" if nl == 4 else "ds_read_b32"
    nr = nl // 2
    def regs(b):
        return pair(b) if nl == 4 else v(b)
    for w in range(4):
        e("  %s %s, v5 offset:%d" % (rd, regs(32 + 2 * w), L_Y + 4096 * w + 2 * lbase))
    for w in range(4):
        e("  %s %s, v6 offset:%d" % (rd, regs(40 + 2 * w), RW * w))
    if nl == 4:
        e("  ds_read_b128 v[48:51], v4 offset:%d" % (L_G + 4 * lbase))
    else:
        e("  ds_read_b64 v[48:49], v4 offset:%d" % (L_G + 4 * lbase))
    e("  s_waitcnt lgkmcnt(0)")
    E = [(k, c) for k in range(nl) for c in range(2)]
    T1, T2, YA, YB, PK, UM, GS = 72, 80, 88, 96, 104, 112, 120
    sel = lambda hi: ("s13" if hi else "s12")
    pad = (lambda: e("  s_nop 2")) if nl == 2 else (lambda: None)
    for (k, c) in E:
        i = 2 * k + c; ee = nl - 1 - k
        dot2(T1 + i, v(40 + 4 * c + (ee >> 1)), v(64 + 2 * c + (ee & 1)))
        dot2(T2 + i, v(42 + 4 * c + (ee >> 1)), v(68 + 2 * c + (ee & 1)))
        dot2(YA + i, v(32 + 4 * c + (k >> 1)), sel(k & 1))
        dot2(YB + i, v(34 + 4 * c + (k >> 1)), sel(k & 1))
        if ee & 1:
            e("  v_and_b32 v%d, %s, v%d" % (UM + i, S_M, 40 + 4 * c + (ee >> 1)))
        else:
            e("  v_lshlrev_b32 v%d, 16, v%d" % (UM + i, 40 + 4 * c + (ee >> 1)))
    pad()
    for (k, c) in E:
        i = 2 * k + c
        e("  v_cvt_pk_bf16_f32 v%d, v%d, v%d" % (PK + i, T1 + i, T2 + i))
    for (k, c) in E:
        i = 2 * k + c
        dot2(T1 + i, v(PK + i), "s12", v(YA + i))
        dot2(T2 + i, v(PK + i), "s13", v(YB + i))
    for k in range(nl):
        e("  v_and_b32 v%d, %s, v%d" % (GS + k, S_LO, 48 + k))
        e("  v_and_b32 v%d, %s, v%d" % (GS + 4 + k, S_M, 48 + k))
    for (k, c) in E:
        i = 2 * k + c
        e("  v_cvt_pk_bf16_f32 v%d, v%d, v%d" % (PK + i, T1 + i, T2 + i))
    for (k, c) in E:
        i = 2 * k + c
        dot2(T1 + i, v(PK + i), v(GS + k))
        dot2(T2 + i, v(PK + i), v(UM + i))
    pad()
    for (k, c) in E:
        i = 2 * k + c
        e("  v_cvt_pk_bf16_f32 v%d, v%d, v%d" % (PK + i, T1 + i, T2 + i))
    for (k, c) in E:
        i = 2 * k + c
        dot2(T2 + i, v(PK + i), v(GS + 4 + k))
    pad()
    for (k, c) in E:
        i = 2 * k + c
        e("  v_cvt_pk_bf16_f32 v%d, v%d, v%d" % (PK + i, T1 + i, T2 + i))
    for (k, c) in E:
        i = 2 * k + c
        dot2(T1 + i, v(PK + i), S_ONES)
    e("  s_nop 2")
    for k in range(nl):
        e("  v_cvt_pk_bf16_f32 v%d, v%d, v%d" % (T2 + k, T1 + 2 * k, T1 + 2 * k + 1))
        e("  global_store_dword v7, v%d, s[48:49] offset:%d" % (T2 + k, 1024 * k))

def dsel():
    e("  v_and_b32 v64, %s, v252" % S_LO)
    e("  v_lshlrev_b32 v65, 16, v252")
    e("  v_lshrrev_b32 v66, 16, v252")
    e("  v_and_b32 v67, %s, v252" % S_M)
    e("  v_and_b32 v68, %s, v253" % S_LO)
    e("  v_lshlrev_b32 v69, 16, v253")
    e("  v_lshrrev_b32 v70, 16, v253")
    e("  v_and_b32 v71, %s, v253" % S_M)
    e("  s_mov_b32 s12, 0x3f80")
    e("  s_mov_b32 s13, 0x3f800000")

def gate_block():
    e("L_uc0:")
    for dd in range(4):
        e("  v_and_b32 v%d, %s, v%d" % (60 + 2 * dd, S_LO, 132 + dd))
        e("  v_and_b32 v%d, %s, v%d" % (61 + 2 * dd, S_M, 132 + dd))
    for rr in range(2):
        for dd in range(4):
            dot2(136 + 8 * rr + 2 * dd, v(124 + 4 * rr + dd), v(60 + 2 * dd))
            dot2(137 + 8 * rr + 2 * dd, v(124 + 4 * rr + dd), v(61 + 2 * dd))
    for rr in range(2):
        for dd in range(4):
            e("  v_cvt_pk_bf16_f32 v%d, v%d, v%d" % (152 + 4 * rr + dd, 136 + 8 * rr + 2 * dd, 137 + 8 * rr + 2 * dd))
    for dd in range(4):
        for rr in range(2):
            dot2(54 + rr, v(152 + 4 * rr + dd), S_ONES, "0" if dd == 0 else v(54 + rr))
    e("  s_nop 2")
    for sh in (1, 2, 4, 8):
        for rr in range(2):
            e("  v_add_f32_dpp v%d, v%d, v%d row_shr:%d row_mask:0xf bank_mask:0xf bound_ctrl:0" % (54 + rr, 54 + rr, 54 + rr, sh))
        e("  s_nop 0")
    for rr in range(2):
        e("  v_add_f32_dpp v%d, v%d, v%d row_bcast:15 row_mask:0xa bank_mask:0xf" % (54 + rr, 54 + rr, 54 + rr))
    e("  s_nop 0")
    for rr in range(2):
        e("  v_add_f32_dpp v%d, v%d, v%d row_bcast:31 row_mask:0xc bank_mask:0xf" % (54 + rr, 54 + rr, 54 + rr))
    e("  v_cvt_pk_bf16_f32 v56, v54, v55")
    e("  v_lshlrev_b32 v54, 16, v56")
    e("  v_and_b32 v55, %s, v56" % S_M)
    for rr in range(2):
        e("  v_mul_f32 v%d, 0x%08x, v%d" % (54 + rr, f2u(-1.4426950408889634), 54 + rr))
    for rr in range(2):
        e("  v_exp_f32 v%d, v%d" % (54 + rr, 54 + rr))
    e("  s_nop 0")
    for rr in range(2):
        e("  v_add_f32 v%d, 1.0, v%d" % (54 + rr, 54 + rr))
    for rr in range(2):
        e("  v_rcp_f32 v%d, v%d" % (54 + rr, 54 + rr))
    e("  s_nop 0")
    e("  v_cvt_pk_bf16_f32 v56, v54, v55")
    e("  v_lshlrev_b32 v54, 16, v56")
    e("  v_and_b32 v55, %s, v56" % S_M)
    e("  v_sub_f32 v56, 1.0, v54")
    e("  v_sub_f32 v57, 1.0, v55")
    e("  v_cvt_pk_bf16_f32 v58, v54, v56")
    e("  v_cvt_pk_bf16_f32 v59, v55, v57")
    chunk_end()
    e("  s_lshl_b32 s8, s35, 2")
    e("  s_add_u32 s8, s8, 0x%x" % WS_G)
    e("  v_mov_b32 v53, s8")
    e("  s_mov_b32 exec_lo, 0")
    e("  s_mov_b32 exec_hi, 0x80000000")
    e("  global_store_dwordx2 v53, v[58:59], s[52:53] sc1")
    e("  s_mov_b64 exec, -1")

def gen():
    e(".globl %s" % KN)
    e(".p2align 8")
    e(".type %s,@function" % KN)
    e("%s:" % KN)
    e("  s_cmp_ge_u32 s2, 256")
    e("  s_cbranch_scc1 L_end")
    stamp(0)
    e("  s_load_dwordx16 s[16:31], s[0:1], 0")
    e("  s_load_dwordx16 s[32:47], s[0:1], 64")
    e("  s_load_dwordx4 s[48:51], s[0:1], 128")
    e("  s_load_dwordx2 s[52:53], s[0:1], 144")
    if not NOPF:
        e("  s_getpc_b64 s[8:9]")
        e("L_pc:")
        e("  v_lshlrev_b32 v4, 4, v0")
        for c in range(NPF):
            e("  global_load_dwordx4 v[%d:%d], v4, s[8:9]" % (100 + 4 * c, 103 + 4 * c))
            if c < NPF - 1:
                e("  v_add_u32 v4, 8192, v4")
                e("  v_min_u32 v4, L_end-L_pc-16, v4")
    e("  v_lshrrev_b32 v4, 6, v0")
    e("  v_and_b32 v1, 63, v0")
    e("  v_readfirstlane_b32 s3, v4")
    e("  v_and_b32 v2, 15, v1")
    e("  v_lshrrev_b32 v3, 4, v1")
    e("  s_and_b32 s4, s2, 7")
    e("  s_lshr_b32 s5, s2, 3")
    e("  s_and_b32 s8, s3, 2")
    e("  s_and_b32 s9, s3, 1")
    e("  s_lshl_b32 s10, s5, 6")
    e("  s_lshl_b32 s8, s8, 4")
    e("  s_add_u32 s10, s10, s8")
    e("  s_lshl_b32 s11, s4, 6")
    e("  s_lshl_b32 s9, s9, 5")
    e("  s_add_u32 s11, s11, s9")
    e("  s_lshl_b32 s12, s10, 10")
    e("  s_lshl_b32 s13, s11, 1")
    e("  s_add_u32 s12, s12, s13")
    e("  v_lshlrev_b32 v5, 13, v3")
    e("  v_lshl_add_u32 v5, v2, 2, v5")
    e("  v_add_u32 v5, s12, v5")
    e("  v_add_u32 v6, 4096, v5")
    e("  s_lshl_b32 s6, s4, 6")
    e("  s_lshl_b32 s8, s5, 1")
    e("  s_add_u32 s6, s6, s8")
    e("  s_lshr_b32 s8, s3, 2")
    e("  s_add_u32 s8, s8, s6")
    e("  s_and_b32 s9, s3, 3")
    e("  s_lshl_b32 s12, s8, 8")
    e("  s_lshl_b32 s13, s9, 6")
    e("  s_add_u32 s12, s12, s13")
    e("  v_and_b32 v8, 31, v1")
    e("  v_lshlrev_b32 v8, 1, v8")
    e("  v_add_u32 v8, s12, v8")
    e("  s_lshl_b32 s13, s8, 1")
    e("  v_mov_b32 v9, s13")
    e("  v_subrev_u32 v7, 3072, v5")
    e("  s_lshl_b32 s13, s11, 3")
    e("  v_lshlrev_b32 v4, 4, v2")
    e("  v_add_u32 v4, s13, v4")
    e("  s_waitcnt lgkmcnt(0)")
    e("  s_cmp_ge_u32 s3, 4")
    e("  s_cbranch_scc1 L_uload")
    e("  s_mov_b32 s12, s36")
    e("  s_and_b32 s13, s37, 0xffff")
    e("  s_mov_b32 s14, 0x200000")
    e("  s_mov_b32 s15, 0x00020000")
    e("  global_load_dwordx4 v[30:33], v4, s[40:41]")
    for h in range(3):
        e("  buffer_load_dword v%d, v7, s[12:15], 0 offen offset:%d" % (10 + h, 1024 * h))
    for r in range(8):
        e("  buffer_load_dword v%d, v%d, s[12:15], 0 offen offset:%d" % (13 + r, 5 + (r >> 2), 1024 * (r & 3)))
    for r in range(8):
        e("  global_load_dword v%d, v%d, s[38:39] offset:%d" % (21 + r, 5 + (r >> 2), 1024 * (r & 3)))
    e("  s_lshl_b32 s8, s2, 7")
    e("  s_add_u32 s8, s8, 0x%x" % WS_MB)
    e("  v_mov_b32 v242, s8")
    e("  v_mov_b32 v243, 0")
    e("  global_load_dwordx2 v[240:241], v242, s[52:53] sc1")
    e("  global_load_ushort v238, v9, s[30:31]")
    for k in range(6):
        e("  global_load_ushort v%d, v8, s[%d:%d]" % (232 + k, 18 + 2 * k, 19 + 2 * k))
    e("  s_branch L_common")
    e("L_uload:")
    for r in range(8):
        e("  global_load_dword v%d, v%d, s[16:17] offset:%d" % (10 + r, 5 + (r >> 2), 1024 * (r & 3)))
    e("  global_load_ushort v238, v9, s[30:31]")
    for k in range(6):
        e("  global_load_ushort v%d, v8, s[%d:%d]" % (232 + k, 18 + 2 * k, 19 + 2 * k))
    e("  s_lshl_b32 s8, s2, 3")
    e("  s_lshl_b32 s12, s9, 1")
    e("  s_add_u32 s35, s8, s12")
    e("  s_lshl_b32 s8, s35, 10")
    e("  v_lshlrev_b32 v241, 4, v1")
    e("  v_add_u32 v243, s8, v241")
    e("  s_lshr_b32 s8, s9, 1")
    e("  s_add_u32 s8, s8, s6")
    e("  s_lshl_b32 s8, s8, 12")
    e("  s_and_b32 s12, s9, 1")
    e("  s_lshl_b32 s12, s12, 11")
    e("  s_add_u32 s8, s8, s12")
    e("  v_add_u32 v242, s8, v241")
    for r in range(4):
        e("  v_mov_b32 v%d, 0" % (44 + r))
    e("  v_mov_b32 v42, %d" % L_CNT)
    e("  ds_write_b128 v42, v[44:47]")
    e("  ds_write_b128 v42, v[44:47] offset:16")
    e("  s_mul_i32 s12, s9, %d" % KRW)
    e("  s_add_u32 s12, s12, %d" % L_K)
    e("  v_add_u32 v42, s12, v241")
    e("  s_mov_b64 exec, 0xf")
    e("  ds_write_b128 v42, v[44:47]")
    e("  s_mov_b64 exec, -1")
    e("  s_or_b32 s12, s9, 1")
    e("  s_mul_i32 s12, s12, %d" % KRW)
    e("  s_and_b32 s13, s9, 1")
    e("  s_lshl_b32 s13, s13, 11")
    e("  s_add_u32 s12, s12, s13")
    e("  s_add_u32 s12, s12, %d" % (L_K + 64))
    e("  v_add_u32 v240, s12, v241")
    e("L_common:")
    e("  s_bfe_u32 s8, s3, 0x10001")
    e("  s_add_u32 s8, s8, s6")
    e("  s_and_b32 s9, s3, 1")
    e("  s_lshl_b32 s8, s8, 12")
    e("  s_lshl_b32 s9, s9, 21")
    e("  s_add_u32 s9, s9, s8")
    e("  s_add_u32 s36, s52, s9")
    e("  s_addc_u32 s37, s53, 0")
    e("  s_and_b32 s37, s37, 0xffff")
    e("  s_mov_b32 s38, 4096")
    e("  s_mov_b32 s39, 0x00020000")
    e("  v_lshlrev_b32 v202, 4, v1")
    e("  v_add_u32 v203, 16, v202")
    e("  s_mov_b32 %s, 0xffff0000" % S_M)
    e("  s_mov_b32 %s, 0xffff" % S_LO)
    e("  s_mov_b32 %s, 0x3f803f80" % S_ONES)
    e("  s_mov_b32 %s, 0x05040100" % S_P0)
    e("  s_mov_b32 %s, 0x07060302" % S_P1)
    e("  s_mul_i32 s8, s3, %d" % TTW)
    e("  s_add_u32 s8, s8, %d" % L_TT)
    e("  v_mul_u32_u24 v4, 160, v2")
    e("  v_lshlrev_b32 v42, 4, v3")
    e("  v_sub_u32 v4, v4, v42")
    e("  v_add3_u32 v4, v4, s8, 48")
    e("  v_lshrrev_b32 v42, 2, v1")
    e("  v_and_b32 v43, 3, v1")
    e("  v_mul_u32_u24 v5, 80, v42")
    e("  v_lshl_add_u32 v5, v43, 4, v5")
    e("  v_add_u32 v5, s8, v5")
    e("  s_lshl_b32 s8, s11, 12")
    e("  s_sub_u32 s9, 2016, s10")
    e("  s_lshl_b32 s9, s9, 1")
    e("  s_add_u32 s8, s8, s9")
    e("  s_cmp_lt_u32 s3, 4")
    e("  s_cselect_b32 s9, 0x%x, 0" % WS_KVT)
    e("  s_add_u32 s8, s8, s9")
    e("  v_lshlrev_b32 v42, 12, v42")
    e("  v_lshl_add_u32 v42, v43, 4, v42")
    e("  v_add_u32 v6, s8, v42")
    e("  v_add_u32 v7, 0x10000, v6")
    e("  v_mov_b32 v217, %d" % L_PT)
    e("  s_waitcnt lgkmcnt(0)")
    e("  s_barrier")
    if not NOWARM:
        e("  s_cmp_ge_u32 s3, 4")
        e("  s_cbranch_scc1 L_uphase")
        e("  s_mov_b64 exec, 0")
        for wv, lab in enumerate(["L_kv0", "L_kv1", "L_kv2", "L_kv3"]):
            e("  s_cmp_eq_u32 s3, %d" % wv)
            e("  s_cbranch_scc1 %s" % lab)
    e("L_warm_ret:")
    e("  s_mov_b64 exec, -1")
    e("  s_cmp_ge_u32 s3, 4")
    e("  s_cbranch_scc1 L_uphase")

    e("  s_setprio 2")
    e("  s_waitcnt vmcnt(16)")
    stamp(1)
    e("L_kv0:")
    WL = [34, 35, 36, 37]; WH = [38, 39, 40, 41]
    e("  v_and_b32 v34, %s, v30" % S_LO)
    e("  v_lshrrev_b32 v35, 16, v30")
    e("  v_and_b32 v36, %s, v31" % S_LO)
    e("  v_lshrrev_b32 v37, 16, v31")
    e("  v_lshlrev_b32 v38, 16, v32")
    e("  v_and_b32 v39, %s, v32" % S_M)
    e("  v_lshlrev_b32 v40, 16, v33")
    e("  v_and_b32 v41, %s, v33" % S_M)
    def kvblock(R, labs):
        rows = range(4 * R, 4 * R + 4)
        A, B, C, D, T = 44, 52, 60, 68, 76
        ix = lambda r, c: 2 * (r & 3) + c
        for r in rows:
            for c in range(2):
                dot2(A + ix(r, c), v(10 + r), v((WL, WH)[c][3]))
                dot2(B + ix(r, c), v(10 + r + 1), v((WL, WH)[c][2]))
        for r in rows:
            for c in range(2):
                dot2(C + ix(r, c), v(10 + r + 2), v((WL, WH)[c][1]))
                e("  v_cvt_pk_bf16_f32 v%d, v%d, v%d" % (T + ix(r, c), A + ix(r, c), B + ix(r, c)))
        for r in rows:
            for c in range(2):
                dot2(D + ix(r, c), v(10 + r + 3), v((WL, WH)[c][0]))
                dot2(A + ix(r, c), v(T + ix(r, c)), S_ONES)
        chunk_end()
        e("%s:" % labs[0])
        for r in rows:
            for c in range(2):
                e("  v_cvt_pk_bf16_f32 v%d, v%d, v%d" % (T + ix(r, c), A + ix(r, c), C + ix(r, c)))
        for r in rows:
            for c in range(2):
                dot2(A + ix(r, c), v(T + ix(r, c)), S_ONES)
        for r in rows:
            for c in range(2):
                e("  v_cvt_pk_bf16_f32 v%d, v%d, v%d" % (T + ix(r, c), A + ix(r, c), D + ix(r, c)))
        for r in rows:
            for c in range(2):
                dot2(A + ix(r, c), v(T + ix(r, c)), S_ONES)
        if R == 0:
            e("  s_cbranch_execz L_kvskipw")
            e("  s_waitcnt vmcnt(8)")
            e("L_kvskipw:")
        for r in rows:
            e("  v_and_b32 v%d, %s, v%d" % (B + ix(r, 0), S_LO, 21 + r))
            e("  v_and_b32 v%d, %s, v%d" % (B + ix(r, 1), S_M, 21 + r))
        for r in rows:
            e("  v_cvt_pk_bf16_f32 v%d, v%d, v%d" % (T + (r & 3), A + ix(r, 0), A + ix(r, 1)))
        for r in rows:
            for c in range(2):
                dot2(C + ix(r, c), v(T + (r & 3)), v(B + ix(r, c)))
        e("  s_nop 1")
        for r in rows:
            e("  v_cvt_pk_bf16_f32 v%d, v%d, v%d" % (88 + r, C + ix(r, 0), C + ix(r, 1)))
        chunk_end()
        if labs[1]:
            e("%s:" % labs[1])
    kvblock(0, ["L_kv1", "L_kv2"])
    kvblock(1, ["L_kv3", None])
    for m in range(4):
        e("  v_perm_b32 v%d, v%d, v%d, %s" % (44 + m, 88 + 6 - 2 * m, 88 + 7 - 2 * m, S_P0))
        e("  v_perm_b32 v%d, v%d, v%d, %s" % (48 + m, 88 + 6 - 2 * m, 88 + 7 - 2 * m, S_P1))
    e("  ds_write_b128 v4, v[44:47]")
    e("  ds_write_b128 v4, v[48:51] offset:80")
    e("  ds_read_b128 v[52:55], v5")
    e("  ds_read_b128 v[56:59], v5 offset:1280")
    e("  s_waitcnt vmcnt(7)")
    e("  v_add_u32 v240, 1, v240")
    e("  v_add_u32 v241, 8, v241")
    e("  v_mov_b32 v10, %d" % (L_CNT + 8))
    e("  ds_write_b32 v10, v241")
    e("  s_waitcnt lgkmcnt(2)")
    e("  global_store_dwordx4 v6, v[52:55], s[52:53] sc1")
    e("  s_waitcnt lgkmcnt(1)")
    e("  global_store_dwordx4 v7, v[56:59], s[52:53] sc1")
    e("  s_setprio 0")
    stamp(2)
    e("  s_mul_i32 s8, s3, %d" % KRW)
    e("  s_add_u32 s8, s8, %d" % (L_K + 4))
    e("  v_lshlrev_b32 v192, 2, v2")
    e("  v_lshl_add_u32 v192, v3, 4, v192")
    e("  v_add_u32 v192, s8, v192")
    for sp in range(1, 8):
        e("  v_add_u32 v%d, %d, v192" % (192 + sp, 512 * sp))
    e("  s_mul_i32 s8, s3, %d" % RW)
    e("  s_add_u32 s8, s8, %d" % L_U)
    e("  v_and_b32 v42, 1, v2")
    e("  v_lshrrev_b32 v43, 1, v2")
    e("  v_sub_u32 v42, 1, v42")
    e("  v_mul_u32_u24 v42, %d, v42" % CPY)
    e("  v_lshlrev_b32 v43, 6, v43")
    e("  v_sub_u32 v42, v42, v43")
    e("  v_lshl_add_u32 v42, v3, 4, v42")
    e("  v_add_u32 v42, 448, v42")
    e("  v_add_u32 v201, s8, v42")
    e("  v_lshlrev_b32 v202, 4, v1")
    e("  v_add_u32 v200, s8, v202")
    for r in range(160, 192):
        e("  v_mov_b32 v%d, 0" % r)
    e("  v_cmp_gt_u32 vcc, 28, v1")
    e("  s_and_saveexec_b64 s[18:19], vcc")
    e("  ds_write_b128 v200, v[160:163] offset:%d" % 4096)
    e("  ds_write_b128 v200, v[160:163] offset:%d" % (4096 + CPY))
    e("  s_mov_b64 exec, s[18:19]")
    e("  s_branch L_kgen")

    e("L_uphase:")
    e("  s_setprio 2")
    e("  s_waitcnt vmcnt(7)")
    stamp(1)
    for m in range(4):
        e("  v_perm_b32 v%d, v%d, v%d, %s" % (44 + m, 10 + 6 - 2 * m, 10 + 7 - 2 * m, S_P0))
        e("  v_perm_b32 v%d, v%d, v%d, %s" % (48 + m, 10 + 6 - 2 * m, 10 + 7 - 2 * m, S_P1))
    e("  ds_write_b128 v4, v[44:47]")
    e("  ds_write_b128 v4, v[48:51] offset:80")
    e("  ds_read_b128 v[52:55], v5")
    e("  ds_read_b128 v[56:59], v5 offset:1280")
    e("  s_waitcnt lgkmcnt(1)")
    e("  global_store_dwordx4 v6, v[52:55], s[52:53] sc1")
    e("  s_waitcnt lgkmcnt(0)")
    e("  global_store_dwordx4 v7, v[56:59], s[52:53] sc1")
    e("  global_load_dwordx4 v[124:127], v243, s[16:17]")
    e("  global_load_dwordx4 v[128:131], v243, s[16:17] offset:1024")
    e("  global_load_dwordx4 v[132:135], v241, s[46:47]")
    e("  global_load_dwordx4 v[244:247], v242, s[42:43]")
    e("  global_load_dwordx4 v[248:251], v242, s[42:43] offset:1024")
    e("  s_setprio 0")
    stamp(2)

    e("L_kgen:")
    for r in range(220, 232):
        e("  v_mov_b32 v%d, 0" % r)
    e("  v_lshrrev_b32 v42, 3, v2")
    e("  v_and_b32 v43, 7, v2")
    e("  v_lshl_add_u32 v42, v42, 7, v43")
    e("  v_cvt_f32_u32 v208, v42")
    e("  v_lshrrev_b32 v42, 2, v2")
    e("  v_and_b32 v43, 3, v2")
    e("  v_lshlrev_b32 v43, 1, v43")
    e("  v_lshl_add_u32 v42, v42, 7, v43")
    e("  v_add_u32 v42, 256, v42")
    e("  v_lshrrev_b32 v44, 1, v2")
    e("  v_and_b32 v43, 1, v2")
    e("  v_lshlrev_b32 v43, 2, v43")
    e("  v_cmp_gt_u32 vcc, 8, v2")
    e("  v_lshl_add_u32 v44, v44, 7, v43")
    e("  v_lshlrev_b32 v45, 7, v2")
    e("  v_cndmask_b32 v42, v44, v42, vcc")
    e("  v_cvt_f32_u32 v209, v42")
    e("  v_add_u32 v45, 1024, v45")
    e("  v_cvt_f32_u32 v210, v45")
    e("  v_lshlrev_b32 v42, 3, v2")
    e("  v_cvt_f32_u32 v211, v42")
    e("  s_mul_i32 s12, s3, 3072")
    e("  v_mov_b32 v46, s12")
    e("  v_lshrrev_b32 v42, 1, v3")
    e("  v_and_b32 v43, 1, v3")
    e("  v_lshlrev_b32 v43, 2, v43")
    e("  v_lshl_add_u32 v42, v42, 7, v43")
    e("  v_lshl_add_u32 v42, v2, 3, v42")
    e("  v_lshl_add_u32 v204, v42, 2, v46")
    e("  v_lshlrev_b32 v42, 6, v3")
    e("  v_add_u32 v42, 256, v42")
    e("  v_lshl_add_u32 v43, v2, 2, v42")
    e("  v_lshl_add_u32 v44, v2, 1, v42")
    e("  v_cmp_gt_u32 vcc, 2, v3")
    e("  v_add_u32 v45, 2, v43")
    e("  v_add_u32 v47, 32, v44")
    e("  v_cndmask_b32 v43, v44, v43, vcc")
    e("  v_cndmask_b32 v45, v47, v45, vcc")
    e("  v_lshl_add_u32 v205, v43, 2, v46")
    e("  v_lshl_add_u32 v206, v45, 2, v46")
    e("  v_lshlrev_b32 v42, 6, v3")
    e("  v_add3_u32 v42, v42, v2, 0")
    e("  v_add_u32 v42, 512, v42")
    e("  v_lshl_add_u32 v207, v42, 2, v46")
    e("  s_lshl_b32 s12, s3, 9")
    e("  s_add_u32 s12, s12, %d" % L_PT)
    e("  v_and_b32 v42, 31, v1")
    e("  v_lshlrev_b32 v42, 4, v42")
    e("  v_add_u32 v216, s12, v42")
    e("  v_lshlrev_b32 v42, 6, v3")
    e("  v_add_u32 v217, s12, v42")
    e("  v_lshrrev_b32 v41, 8, v0")
    e("  v_and_b32 v40, 255, v0")
    e("  v_mul_u32_u24 v42, 12288, v41")
    e("  v_lshlrev_b32 v43, 3, v40")
    e("  v_cmp_gt_u32 vcc, 16, v40")
    for ee in range(0, 8, 2):
        e("  v_add_u32 v44, %d, v43" % ee)
        e("  v_add_u32 v45, %d, v43" % (ee + 1))
        e("  v_cvt_f32_u32 v46, v44")
        e("  v_cvt_f32_u32 v47, v45")
        e("  v_cvt_pk_bf16_f32 v46, v46, v47")
        e("  v_and_b32 v47, %s, v46" % S_LO)
        e("  v_lshrrev_b32 v46, 16, v46")
        e("  v_subrev_u32 v47, 17024, v47")
        e("  v_subrev_u32 v46, 17024, v46")
        e("  v_cndmask_b32 v47, v47, v44, vcc")
        e("  v_cndmask_b32 v46, v46, v45, vcc")
        e("  v_lshl_add_u32 v%d, v47, 2, v42" % (116 + ee))
        e("  v_lshl_add_u32 v%d, v46, 2, v42" % (117 + ee))
    e("  v_mul_u32_u24 v44, %d, v41" % (2 * KRW))
    e("  v_lshl_add_u32 v44, v40, 4, v44")
    e("  v_add_u32 v219, %d, v44" % (L_K + 64))
    e("  s_waitcnt vmcnt(7)")
    e("  s_cmp_ge_u32 s3, 4")
    e("  s_cbranch_scc1 L_kp")
    e("  s_waitcnt vmcnt(2)")
    L2E = 1.4426950408889634
    L2E_HI = struct.unpack("<f", struct.pack("<I", f2u(L2E) & 0xFFFFFF00))[0]
    L2E_LO = L2E - L2E_HI
    e("L_kp:")
    for k in range(7):
        e("  v_lshlrev_b32 v%d, 16, v%d" % (232 + k, 232 + k))
    e("  v_mul_f32 v42, 0x%08x, v238" % f2u(L2E_HI))
    e("  v_mul_f32 v43, 0x%08x, v238" % f2u(L2E_LO * math.log(2.0)))
    e("  v_exp_f32 v42, v42")
    e("  s_nop 0")
    e("  v_fma_f32 v42, v42, v43, v42")
    e("  v_cvt_pk_bf16_f32 v42, v42, v42")
    e("  v_lshlrev_b32 v44, 16, v42")
    e("  v_mul_f32 v42, 0x%08x, v44" % f2u(L2E))
    e("  v_mul_f32 v43, 0x%08x, v44" % f2u(1.0 / (2.0 * math.pi)))
    e("  v_pk_mul_f32 v[232:233], v[232:233], v[42:43]")
    e("  v_pk_mul_f32 v[46:47], v[234:235], v[44:45] op_sel:[0,0] op_sel_hi:[1,0]")
    e("  v_pk_mul_f32 v[48:49], v[236:237], v[46:47] op_sel:[0,0] op_sel_hi:[0,1]")
    e("  v_pk_fma_f32 v[234:235], v[236:237], v[46:47], v[48:49] op_sel:[1,1,0] op_sel_hi:[1,0,1] neg_lo:[1,0,0]")
    e("  v_max_f32 v50, |v234|, |v235|")
    e("  s_nop 1")
    for sh in (1, 2, 4, 8):
        e("  v_max_f32_dpp v50, v50, v50 row_shr:%d row_mask:0xf bank_mask:0xf bound_ctrl:0" % sh)
        e("  s_nop 1")
    e("  v_max_f32_dpp v50, v50, v50 row_bcast:15 row_mask:0xa bank_mask:0xf")
    e("  s_nop 1")
    e("  v_readlane_b32 s12, v50, 31")
    e("  s_nop 1")
    e("  v_mov_b32 v50, s12")
    e("  v_frexp_exp_i32_f32 v50, v50")
    e("  v_sub_u32 v51, 0, v50")
    e("  v_ldexp_f32 v218, 1.0, v50")
    e("  v_ldexp_f32 v234, v234, v51")
    e("  v_ldexp_f32 v235, v235, v51")
    e("  ds_write_b128 v216, v[232:235]")
    e("  s_mov_b32 s59, 0")
    e("  s_mov_b32 s34, 0")
    e("  v_mov_b32 v48, %d" % L_CNT)
    e("  v_mov_b32 v49, 1")
    grp_off(50, 0)
    e("  s_waitcnt vmcnt(5)")
    e("  s_cmp_ge_u32 s3, 4")
    e("  s_cbranch_scc1 L_arr0")
    e("  s_waitcnt vmcnt(0)")
    e("L_arr0:")
    stamp(3)
    e("  s_mov_b64 exec, 1")
    e("  ds_add_rtn_u32 v52, v48, v49")
    e("  s_waitcnt lgkmcnt(0)")
    e("  v_cmp_eq_u32 vcc, 7, v52")
    e("  s_and_b64 exec, exec, vcc")
    e("  s_cbranch_execz L_arr1")
    e("  global_atomic_add v51, v50, v49, s[50:51] sc0 sc1")
    e("  s_mov_b32 s34, 1")
    e("L_arr1:")
    e("  s_mov_b64 exec, -1")
    e("L_kstart:")
    e("  ds_read_b128 v[40:43], v217")
    e("L_kloop:")
    A0, B0 = 100, 112
    for mm in range(4):
        P = 40 + 4 * (mm & 1)
        Z, CB = P, P + 2
        e("  s_waitcnt lgkmcnt(0)")
        if mm in (0, 2):
            e("L_kb%d:" % mm)
        nxt = (mm + 1) * 16 if mm < 3 else 256
        e("  ds_read_b128 %s, v217 offset:%d" % (quad(40 + 4 * ((mm + 1) & 1)), nxt))
        lam = [("v[208:209]", 0), ("v[208:209]", 1), ("v[210:211]", 0), ("v[210:211]", 1)]
        for a in range(4):
            l, h = lam[a]
            e("  v_pk_mul_f32 %s, %s, %s op_sel:[0,%d] op_sel_hi:[1,%d]" % (pair(92 + 2 * a), pair(Z), l, h, h))
        for a in range(4):
            e("  v_fract_f32 v%d, v%d" % (24 + a, 93 + 2 * a))
        for a in range(4):
            e("  v_exp_f32 v%d, v%d" % (16 + 2 * a, 92 + 2 * a))
            e("  v_cos_f32 v%d, v%d" % (8 + 2 * a, 24 + a))
            e("  v_sin_f32 v%d, v%d" % (9 + 2 * a, 24 + a))
        e("  s_nop 0")
        for a in range(4):
            e("  v_pk_mul_f32 %s, %s, %s op_sel:[0,0] op_sel_hi:[1,0]" % (pair(76 + 2 * a), pair(8 + 2 * a), pair(16 + 2 * a)))
        e("  v_pk_mul_f32 v[30:31], v[82:83], %s op_sel:[0,0] op_sel_hi:[0,1]" % pair(CB))
        for a in range(3):
            e("  v_cvt_pk_f16_f32 v%d, v%d, v%d" % (A0 + 4 * a + mm, 76 + 2 * a, 77 + 2 * a))
        e("  v_pk_fma_f32 v[30:31], v[82:83], %s, v[30:31] op_sel:[1,1,0] op_sel_hi:[1,0,1] neg_lo:[1,0,0] neg_hi:[1,0,1]" % pair(CB))
        e("  v_cvt_pk_f16_f32 v%d, v30, v31" % (B0 + mm))
        if mm in (1, 3):
            chunk_end()
        if mm == 1:
            e("  s_cmp_eq_u32 s34, 0")
            e("  s_cbranch_scc1 L_skip_arr2")
            e("  s_mov_b32 s34, 0")
            e("  s_waitcnt vmcnt(0)")
            e("  s_mov_b64 exec, 1")
            e("  v_and_b32 v51, 31, v51")
            e("  v_cmp_eq_u32 vcc, 31, v51")
            e("  s_and_b64 exec, exec, vcc")
            e("  s_cbranch_execz L_arr_done")
            e("  s_mov_b64 exec, 0xffffffff")
            e("  v_lshlrev_b32 v52, 10, v1")
            e("  s_lshl_b32 s8, s4, 7")
            e("  s_add_u32 s8, s8, 0x%x" % WS_MB)
            e("  v_add_u32 v52, s8, v52")
            e("  global_atomic_add v52, v49, s[52:53] sc1")
            e("L_arr_done:")
            e("  s_mov_b64 exec, -1")
            e("L_skip_arr2:")
    e("  v_add_u32 v217, 256, v217")
    e("  s_nop 0")
    for t in range(3):
        e("  v_mfma_f32_16x16x32_f16 %s, %s, %s, %s" % (quad(220 + 4 * t), quad(A0 + 4 * t), quad(B0), quad(220 + 4 * t)))
    e("  s_cmp_lg_u32 s59, 0")
    e("  s_cbranch_scc1 L_kdone")
    e("  s_mov_b32 s59, 1")
    e("  s_cmp_lt_u32 s3, 4")
    e("  s_cbranch_scc1 L_kloop")
    e("  s_waitcnt vmcnt(2)")
    gate_block()
    e("  s_branch L_kloop")
    e("L_kdone:")
    stamp(4)
    for r in range(12):
        e("  v_mul_f32 v%d, v218, v%d" % (220 + r, 220 + r))
    e("  ds_write_b128 v204, v[220:223]")
    e("  ds_write_b64 v205, v[224:225]")
    e("  ds_write_b64 v206, v[226:227]")
    for r in range(4):
        e("  ds_write_b32 v207, v%d offset:%d" % (228 + r, 64 * r))
    e("  s_cmp_lt_u32 s3, 4")
    e("  s_cbranch_scc1 L_nossm")
    e("  s_waitcnt vmcnt(1)")
    e("  ds_write_b128 v240, v[244:247]")
    e("  ds_write_b128 v240, v[248:251] offset:1024")
    e("L_nossm:")
    e("  s_waitcnt lgkmcnt(0)")
    e("  s_barrier")
    for ee in range(8):
        e("  ds_read2st64_b32 %s, v%d offset0:0 offset1:12" % (pair(48 + 4 * ee), 116 + ee))
        e("  ds_read2st64_b32 %s, v%d offset0:24 offset1:36" % (pair(50 + 4 * ee), 116 + ee))
    e("  s_lshl_b32 s8, s6, 1")
    e("  v_mov_b32 v7, s8")
    e("  global_load_dword v252, v7, s[32:33]")
    e("  global_load_dword v253, v7, s[44:45]")
    for p in range(4):
        e("  s_waitcnt lgkmcnt(%d)" % (12 - 4 * p))
        for h in range(2):
            b = 48 + 8 * p + 4 * h
            e("  v_pk_add_f32 %s, %s, %s" % (pair(b), pair(b), pair(b + 2)))
        for h in range(2):
            b = 48 + 8 * p + 4 * h
            e("  v_add_f32 v%d, v%d, v%d" % (b, b, b + 1))
        e("  v_cvt_pk_bf16_f32 v%d, v%d, v%d" % (84 + p, 48 + 8 * p, 52 + 8 * p))
    e("  ds_write_b128 v219, v[84:87]")
    e("  s_cmp_ge_u32 s3, 4")
    e("  s_cbranch_scc1 L_upost")

    poll("L_pollT", 242, 240)
    stamp(5)
    for k in range(4):
        e("  buffer_load_dwordx4 %s, v202, s[36:39], 0 offen offset:%d sc1" % (quad(8 + 4 * k), 1024 * k))
    for k in range(4):
        e("  buffer_load_dword v%d, v203, s[36:39], 0 offen offset:%d sc1" % (24 + k, 1024 * k))
    e("  s_waitcnt lgkmcnt(0)")
    e("  s_barrier")
    def kreg(st, sp):
        return 32 + 64 * st + 4 * sp
    def ureg(st, bp):
        return 32 + 64 * st + 32 + 4 * bp
    def kloads(rc, n, st):
        ins = []
        for sp in range(n):
            ins.append("  ds_read2_b32 %s, v%d offset0:%d offset1:%d" % (pair(kreg(st, sp)), 192 + sp, 16 * rc, 16 * rc + 1))
            ins.append("  ds_read2_b32 %s, v%d offset0:%d offset1:%d" % (pair(kreg(st, sp) + 2), 192 + sp, 16 * rc + 2, 16 * rc + 3))
        return ins
    def uloads(rc, n, st):
        ins = []
        for bp in range(n):
            beta = 8 * bp - rc
            ins.append("  ds_read_b128 %s, v201 offset:%d" % (quad(ureg(st, bp)), 3584 - 64 * beta))
        return ins
    stages = [(0, rc) for rc in range(8)] + ([(1, rc) for rc in range(8)] if TA < 8 else [])
    def nfr(ps):
        return TA if ps == 0 else 8
    for x in kloads(0, TA, 0):
        e(x)
    for k in range(4):
        b = 8 + 4 * k
        e("  s_waitcnt vmcnt(%d)" % (3 - k))
        e("  ds_write_b128 v200, %s offset:%d" % (quad(b), 1024 * k))
        e("  v_alignbit_b32 v28, v%d, v%d, 16" % (b + 1, b))
        e("  v_alignbit_b32 v29, v%d, v%d, 16" % (b + 2, b + 1))
        e("  v_alignbit_b32 v30, v%d, v%d, 16" % (b + 3, b + 2))
        e("  v_alignbit_b32 v31, v%d, v%d, 16" % (24 + k, b + 3))
        e("  ds_write_b128 v200, v[28:31] offset:%d" % (1024 * k + CPY))
        e("  s_nop 1")
    stamp(6)
    for x in uloads(0, TA, 0):
        e(x)
    e("  s_lshl_b32 s8, s3, 12")
    e("  s_add_u32 s8, s8, %d" % L_Y)
    e("  v_lshlrev_b32 v5, 7, v3")
    e("  v_lshl_add_u32 v5, v2, 2, v5")
    e("  v_add_u32 v5, s8, v5")
    e("  v_mov_b32 v6, %d" % (L_CNT + 4))
    e("  v_mov_b32 v7, 1")
    def ywrite(tiles):
        ins = []
        for t in tiles:
            a = 160 + 4 * t
            ins.append("  v_cvt_pk_bf16_f32 v%d, v%d, v%d" % (8 + 2 * t, a, a + 1))
            ins.append("  v_cvt_pk_bf16_f32 v%d, v%d, v%d" % (9 + 2 * t, a + 2, a + 3))
            ins.append("  ds_write_b32 v5, v%d offset:%d" % (8 + 2 * t, 512 * t))
            ins.append("  ds_write_b32 v5, v%d offset:%d" % (9 + 2 * t, 512 * t + 64))
        return ins
    for si, (ps, rc) in enumerate(stages):
        st = si & 1
        e("  s_waitcnt lgkmcnt(0)")
        mf = []
        for sp in range(8):
            for bp in range(8 - sp):
                t = sp + bp
                if (t < TA) == (ps == 0):
                    mf.append("  v_mfma_f32_16x16x32_bf16 %s, %s, %s, %s" % (quad(160 + 4 * t), quad(ureg(st, bp)), quad(kreg(st, sp)), quad(160 + 4 * t)))
        nl = []
        if si + 1 < len(stages):
            ps2, rc2 = stages[si + 1]
            n = nfr(ps2)
            kl, ul = kloads(rc2, n, st ^ 1), uloads(rc2, n, st ^ 1)
            for i in range(n):
                nl += [kl[2 * i], kl[2 * i + 1], ul[i]]
        extra = []
        if (ps, rc) == (1, 0):
            extra = ywrite(range(TA))
        per = max(1, -(-len(nl) // len(mf)))
        li = 0
        for i, x in enumerate(mf):
            e(x)
            for _ in range(per):
                if li < len(nl):
                    e(nl[li]); li += 1
            if i >= 4 and extra:
                for _ in range(2):
                    if extra:
                        e(extra.pop(0))
        while li < len(nl):
            e(nl[li]); li += 1
        for x in extra:
            e(x)
        if (ps, rc) == (1, 1):
            pass
        if (ps, rc) == (1, 0):
            L.append("@PUBLISH")
    if TA < 8:
        idx = L.index("@PUBLISH")
        assert L[idx + 1].strip() == "s_waitcnt lgkmcnt(0)"
        L[idx:idx + 2] = ["  s_waitcnt lgkmcnt(0)", "  s_mov_b64 exec, 1", "  ds_add_u32 v6, v7", "  s_mov_b64 exec, -1"]
    e("  s_nop 7")
    stamp(7)
    for x in ywrite(range(TA, 8) if TA < 8 else range(8)):
        e(x)
    e("  s_waitcnt vmcnt(0)")
    dsel()
    e("  s_branch L_final")

    e("L_upost:")
    e("  s_waitcnt lgkmcnt(0)")
    e("  s_barrier")
    stamp(5)
    e("  v_mov_b32 v48, %d" % (L_CNT + 16))
    e("  v_mov_b32 v49, 1")
    grp_off(50, 4)
    e("  s_waitcnt vmcnt(0)")
    e("  s_mov_b64 exec, 1")
    e("  ds_add_rtn_u32 v52, v48, v49")
    e("  s_waitcnt lgkmcnt(0)")
    e("  v_cmp_eq_u32 vcc, 3, v52")
    e("  s_and_b64 exec, exec, vcc")
    e("  s_cbranch_execz L_garr_done")
    e("  global_atomic_add v53, v50, v49, s[50:51] sc0 sc1")
    e("  s_waitcnt vmcnt(0)")
    e("  v_and_b32 v53, 31, v53")
    e("  v_cmp_eq_u32 vcc, 31, v53")
    e("  s_and_b64 exec, exec, vcc")
    e("  s_cbranch_execz L_garr_done")
    e("  s_mov_b64 exec, -1")
    e("  v_lshlrev_b32 v52, 7, v1")
    e("  v_add_u32 v52, 0x%x, v52" % (WS_MB + 4))
    for c in range(4):
        e("  global_atomic_add v52, v49, s[52:53] sc1")
        if c < 3:
            e("  v_add_u32 v52, 8192, v52")
    e("L_garr_done:")
    e("  s_mov_b64 exec, -1")
    e("  s_cmp_lg_u32 s3, 4")
    e("  s_cbranch_scc1 L_uwait")
    e("  v_mov_b32 v10, %d" % (L_CNT + 8))
    e("  ds_read_b32 v11, v10")
    e("  s_lshl_b32 s8, s2, 7")
    e("  s_add_u32 s8, s8, 0x%x" % (WS_MB + 4))
    e("  v_mov_b32 v10, s8")
    e("  s_waitcnt lgkmcnt(0)")
    poll("L_pollG", 10, 11)
    e("  v_lshlrev_b32 v40, 4, v1")
    e("  v_add_u32 v41, 0x%x, v40" % WS_G)
    e("  v_add_u32 v42, 4096, v41")
    for c in range(8):
        e("  global_load_dwordx4 %s, v%d, s[52:53] offset:%d sc1" % (quad(72 + 4 * c), 41 + (c >> 2), 1024 * (c & 3)))
    for c in range(8):
        e("  s_waitcnt vmcnt(%d)" % (7 - c))
        e("  ds_write_b128 v40, %s offset:%d" % (quad(72 + 4 * c), L_G + 1024 * c))
    e("  v_mov_b32 v10, %d" % (L_CNT + 12))
    e("  v_mov_b32 v11, 1")
    e("  s_waitcnt lgkmcnt(0)")
    e("  ds_write_b32 v10, v11")
    stamp(6)
    e("L_uwait:")
    e("  s_waitcnt vmcnt(0)")
    dsel()
    if TA < 8:
        e("  v_mov_b32 v10, %d" % L_CNT)
        e("  s_mov_b32 s58, 0")
        e("L_lspin:")
        e("  ds_read_b128 v[12:15], v10")
        e("  s_waitcnt lgkmcnt(0)")
        e("  v_lshl_add_u32 v12, v15, 4, v13")
        e("  v_cmp_ne_u32 vcc, 20, v12")
        e("  s_add_u32 s58, s58, 1")
        e("  s_cmp_ge_u32 s58, %d" % (SPIN_MAX * 4))
        e("  s_cbranch_scc1 L_lspin_done")
        e("  s_cbranch_vccz L_lspin_done")
        e("  s_sleep 4")
        e("  s_branch L_lspin")
        e("L_lspin_done:")
        e("  v_subrev_u32 v254, 256, v0")
        if TA == 4:
            combine(4, 254, 0)
        else:
            raise SystemExit("TA != 4 unsupported in combine split for now")
    stamp(7)

    e("L_final:")
    e("  s_waitcnt lgkmcnt(0)")
    e("  s_barrier")
    stamp(8)
    if TA < 8:
        combine(2, 0, 1024)
    else:
        combine(4, 0, 0)
    stamp(9)
    stamp_flush(10)
    e("L_end:")
    e("  s_endpgm")

def main():
    e(HEADER.rstrip("\n"))
    e("; @launch grid=(256,1,1) block=(512,1,1) lds=%d" % LDS_TOTAL)
    e('.amdgcn_target "amdgcn-amd-amdhsa--gfx950"')
    e(".text")
    gen()
    e('.section .rodata,"a"')
    e(".p2align 6")
    e(".amdhsa_kernel %s" % KN)
    e("  .amdhsa_next_free_vgpr 256")
    e("  .amdhsa_next_free_sgpr 102")
    e("  .amdhsa_accum_offset 256")
    e("  .amdhsa_group_segment_fixed_size 0")
    e("  .amdhsa_kernarg_size 152")
    e("  .amdhsa_user_sgpr_count 2")
    e("  .amdhsa_user_sgpr_kernarg_segment_ptr 1")
    e("  .amdhsa_system_sgpr_workgroup_id_x 1")
    e(".end_amdhsa_kernel")
    args = [a for a in sys.argv[1:] if not a.startswith("--")]
    open(args[0] if args else OUT, "w").write("\n".join(L) + "\n")

main()
```

```python
import struct, sys, math

NAME = "gated_mix__ssm_conv_s4__ssm_conv_h3__prompt"
OUT = "cdna_kernels/%s.s" % NAME
KN = NAME + "_kernel"

def f2u(x):
    return struct.unpack("<I", struct.pack("<f", x))[0]

L = []
def e(s=""):
    L.append(s)

STAMP = "--stamp" in sys.argv
NOWARM = "--nowarm" in sys.argv
NOPF = "--nopf" in sys.argv
TA = 4
for a in sys.argv:
    if a.startswith("--ta="):
        TA = int(a[5:])
NPF = 2
WS_UT, WS_KVT, WS_G, WS_MB, WS_ST = 0x000000, 0x200000, 0x600000, 0x700000, 0x800000

def stamp(i):
    if STAMP:
        e("  s_memrealtime s[%d:%d]" % (60 + 2 * i, 61 + 2 * i))
        e("  s_memtime s[%d:%d]" % (80 + 2 * i, 81 + 2 * i))
def stamp_flush(n):
    if not STAMP:
        return
    e("  s_waitcnt vmcnt(0) lgkmcnt(0)")
    e("  s_mov_b64 exec, 1")
    e("  v_lshrrev_b32 v124, 6, v0")
    e("  v_lshlrev_b32 v124, 8, v124")
    e("  s_lshl_b32 s100, s2, 11")
    e("  s_add_u32 s100, s100, 0x%x" % WS_ST)
    e("  v_add_u32 v124, s100, v124")
    for i in range(n):
        e("  v_mov_b32 v126, s%d" % (60 + 2 * i))
        e("  v_mov_b32 v127, s%d" % (61 + 2 * i))
        e("  global_store_dwordx2 v124, v[126:127], s[52:53] offset:%d" % (8 * i))
        e("  s_nop 1")
        e("  v_mov_b32 v126, s%d" % (80 + 2 * i))
        e("  v_mov_b32 v127, s%d" % (81 + 2 * i))
        e("  global_store_dwordx2 v124, v[126:127], s[52:53] offset:%d" % (128 + 8 * i))
        e("  s_nop 1")

HEADER = open("cdna_kernels/%s.s.ref" % NAME).read().split("; Override launch")[0]

def pair(r):
    return "v[%d:%d]" % (r, r + 1)
def quad(r):
    return "v[%d:%d]" % (r, r + 3)
def v(r):
    return "v%d" % r

S_M, S_LO, S_ONES, S_P0, S_P1 = "s7", "s54", "s55", "s56", "s57"

CPY = 4640
RW = 9216
KRW = 4224
L_TAB = 0
L_CNT = 24576
L_PT = 24704
L_G = L_PT + 4096
L_Y = L_G + 8192
L_U = L_Y + 4 * 4096
L_K = L_U + 4 * RW
LDS_TOTAL = L_K + 4 * KRW
L_TT = L_G
TTW = 2560
SPIN_MAX = 1 << 18

def dot2(d, a, b, c="0"):
    e("  v_dot2_f32_bf16 v%d, %s, %s, %s" % (d, a, b, c))

def poll(label, off_reg, want_reg, data=(9, 14, 15, 16)):
    e("  s_mov_b32 s58, 0")
    e("  s_mov_b64 exec, 1")
    for d in data[:3]:
        e("  global_load_dword v%d, v%d, s[52:53] sc1" % (d, off_reg))
        e("  s_sleep 1")
    e("%s:" % label)
    for i in range(4):
        e("  global_load_dword v%d, v%d, s[52:53] sc1" % (data[(i + 3) % 4], off_reg))
        e("  s_waitcnt vmcnt(3)")
        e("  v_cmp_ne_u32 vcc, v%d, v%d" % (want_reg, data[i]))
        e("  s_add_u32 s58, s58, 1")
        e("  s_nop 0")
        e("  s_cbranch_vccz %s_done" % label)
        if "--nosleep" not in sys.argv:
            e("  s_sleep 1")
    e("  s_cmp_lt_u32 s58, %d" % SPIN_MAX)
    e("  s_cbranch_scc1 %s" % label)
    e("%s_done:" % label)
    e("  s_waitcnt vmcnt(0)")
    e("  s_mov_b64 exec, -1")

def chunk_end():
    e("  s_cbranch_execz L_warm_ret")

def grp_off(dst, extra):
    e("  s_lshr_b32 s8, s4, 1")
    e("  s_lshl_b32 s8, s8, 6")
    e("  s_and_b32 s9, s4, 1")
    e("  s_lshl_b32 s9, s9, 4")
    e("  s_add_u32 s8, s8, s9")
    if extra:
        e("  s_add_u32 s8, s8, %d" % extra)
    e("  v_mov_b32 v%d, s8" % dst)

def combine(nl, tidreg, lbase):
    sh = {4: 3, 2: 2}[nl]
    e("  v_lshlrev_b32 v5, %d, v%d" % (sh, tidreg))
    e("  v_sub_u32 v6, %d, v5" % (L_U + 4096 - 2 * lbase - 2 * nl))
    e("  v_lshlrev_b32 v4, %d, v%d" % (sh + 1, tidreg))
    e("  v_lshlrev_b32 v7, %d, v%d" % (sh + 9, tidreg))
    e("  s_lshl_b32 s8, s6, 1")
    e("  s_add_u32 s8, s8, %d" % (lbase * 1024))
    e("  v_add_u32 v7, s8, v7")
    rd = "ds_read_b64" if nl == 4 else "ds_read_b32"
    nr = nl // 2
    def regs(b):
        return pair(b) if nl == 4 else v(b)
    for w in range(4):
        e("  %s %s, v5 offset:%d" % (rd, regs(32 + 2 * w), L_Y + 4096 * w + 2 * lbase))
    for w in range(4):
        e("  %s %s, v6 offset:%d" % (rd, regs(40 + 2 * w), RW * w))
    if nl == 4:
        e("  ds_read_b128 v[48:51], v4 offset:%d" % (L_G + 4 * lbase))
    else:
        e("  ds_read_b64 v[48:49], v4 offset:%d" % (L_G + 4 * lbase))
    e("  s_waitcnt lgkmcnt(0)")
    E = [(k, c) for k in range(nl) for c in range(2)]
    T1, T2, YA, YB, PK, UM, GS = 72, 80, 88, 96, 104, 112, 120
    sel = lambda hi: ("s13" if hi else "s12")
    pad = (lambda: e("  s_nop 2")) if nl == 2 else (lambda: None)
    for (k, c) in E:
        i = 2 * k + c; ee = nl - 1 - k
        dot2(T1 + i, v(40 + 4 * c + (ee >> 1)), v(64 + 2 * c + (ee & 1)))
        dot2(T2 + i, v(42 + 4 * c + (ee >> 1)), v(68 + 2 * c + (ee & 1)))
        dot2(YA + i, v(32 + 4 * c + (k >> 1)), sel(k & 1))
        dot2(YB + i, v(34 + 4 * c + (k >> 1)), sel(k & 1))
        if ee & 1:
            e("  v_and_b32 v%d, %s, v%d" % (UM + i, S_M, 40 + 4 * c + (ee >> 1)))
        else:
            e("  v_lshlrev_b32 v%d, 16, v%d" % (UM + i, 40 + 4 * c + (ee >> 1)))
    pad()
    for (k, c) in E:
        i = 2 * k + c
        e("  v_cvt_pk_bf16_f32 v%d, v%d, v%d" % (PK + i, T1 + i, T2 + i))
    for (k, c) in E:
        i = 2 * k + c
        dot2(T1 + i, v(PK + i), "s12", v(YA + i))
        dot2(T2 + i, v(PK + i), "s13", v(YB + i))
    for k in range(nl):
        e("  v_and_b32 v%d, %s, v%d" % (GS + k, S_LO, 48 + k))
        e("  v_and_b32 v%d, %s, v%d" % (GS + 4 + k, S_M, 48 + k))
    for (k, c) in E:
        i = 2 * k + c
        e("  v_cvt_pk_bf16_f32 v%d, v%d, v%d" % (PK + i, T1 + i, T2 + i))
    for (k, c) in E:
        i = 2 * k + c
        dot2(T1 + i, v(PK + i), v(GS + k))
        dot2(T2 + i, v(PK + i), v(UM + i))
    pad()
    for (k, c) in E:
        i = 2 * k + c
        e("  v_cvt_pk_bf16_f32 v%d, v%d, v%d" % (PK + i, T1 + i, T2 + i))
    for (k, c) in E:
        i = 2 * k + c
        dot2(T2 + i, v(PK + i), v(GS + 4 + k))
    pad()
    for (k, c) in E:
        i = 2 * k + c
        e("  v_cvt_pk_bf16_f32 v%d, v%d, v%d" % (PK + i, T1 + i, T2 + i))
    for (k, c) in E:
        i = 2 * k + c
        dot2(T1 + i, v(PK + i), S_ONES)
    e("  s_nop 2")
    for k in range(nl):
        e("  v_cvt_pk_bf16_f32 v%d, v%d, v%d" % (T2 + k, T1 + 2 * k, T1 + 2 * k + 1))
        e("  global_store_dword v7, v%d, s[48:49] offset:%d" % (T2 + k, 1024 * k))

def dsel():
    e("  v_and_b32 v64, %s, v252" % S_LO)
    e("  v_lshlrev_b32 v65, 16, v252")
    e("  v_lshrrev_b32 v66, 16, v252")
    e("  v_and_b32 v67, %s, v252" % S_M)
    e("  v_and_b32 v68, %s, v253" % S_LO)
    e("  v_lshlrev_b32 v69, 16, v253")
    e("  v_lshrrev_b32 v70, 16, v253")
    e("  v_and_b32 v71, %s, v253" % S_M)
    e("  s_mov_b32 s12, 0x3f80")
    e("  s_mov_b32 s13, 0x3f800000")

def gate_block():
    e("L_uc0:")
    for dd in range(4):
        e("  v_and_b32 v%d, %s, v%d" % (60 + 2 * dd, S_LO, 132 + dd))
        e("  v_and_b32 v%d, %s, v%d" % (61 + 2 * dd, S_M, 132 + dd))
    for rr in range(2):
        for dd in range(4):
            dot2(136 + 8 * rr + 2 * dd, v(124 + 4 * rr + dd), v(60 + 2 * dd))
            dot2(137 + 8 * rr + 2 * dd, v(124 + 4 * rr + dd), v(61 + 2 * dd))
    for rr in range(2):
        for dd in range(4):
            e("  v_cvt_pk_bf16_f32 v%d, v%d, v%d" % (152 + 4 * rr + dd, 136 + 8 * rr + 2 * dd, 137 + 8 * rr + 2 * dd))
    for dd in range(4):
        for rr in range(2):
            dot2(54 + rr, v(152 + 4 * rr + dd), S_ONES, "0" if dd == 0 else v(54 + rr))
    e("  s_nop 2")
    for sh in (1, 2, 4, 8):
        for rr in range(2):
            e("  v_add_f32_dpp v%d, v%d, v%d row_shr:%d row_mask:0xf bank_mask:0xf bound_ctrl:0" % (54 + rr, 54 + rr, 54 + rr, sh))
        e("  s_nop 0")
    for rr in range(2):
        e("  v_add_f32_dpp v%d, v%d, v%d row_bcast:15 row_mask:0xa bank_mask:0xf" % (54 + rr, 54 + rr, 54 + rr))
    e("  s_nop 0")
    for rr in range(2):
        e("  v_add_f32_dpp v%d, v%d, v%d row_bcast:31 row_mask:0xc bank_mask:0xf" % (54 + rr, 54 + rr, 54 + rr))
    e("  v_cvt_pk_bf16_f32 v56, v54, v55")
    e("  v_lshlrev_b32 v54, 16, v56")
    e("  v_and_b32 v55, %s, v56" % S_M)
    for rr in range(2):
        e("  v_mul_f32 v%d, 0x%08x, v%d" % (54 + rr, f2u(-1.4426950408889634), 54 + rr))
    for rr in range(2):
        e("  v_exp_f32 v%d, v%d" % (54 + rr, 54 + rr))
    e("  s_nop 0")
    for rr in range(2):
        e("  v_add_f32 v%d, 1.0, v%d" % (54 + rr, 54 + rr))
    for rr in range(2):
        e("  v_rcp_f32 v%d, v%d" % (54 + rr, 54 + rr))
    e("  s_nop 0")
    e("  v_cvt_pk_bf16_f32 v56, v54, v55")
    e("  v_lshlrev_b32 v54, 16, v56")
    e("  v_and_b32 v55, %s, v56" % S_M)
    e("  v_sub_f32 v56, 1.0, v54")
    e("  v_sub_f32 v57, 1.0, v55")
    e("  v_cvt_pk_bf16_f32 v58, v54, v56")
    e("  v_cvt_pk_bf16_f32 v59, v55, v57")
    chunk_end()
    e("  s_lshl_b32 s8, s35, 2")
    e("  s_add_u32 s8, s8, 0x%x" % WS_G)
    e("  v_mov_b32 v53, s8")
    e("  s_mov_b32 exec_lo, 0")
    e("  s_mov_b32 exec_hi, 0x80000000")
    e("  global_store_dwordx2 v53, v[58:59], s[52:53] sc1")
    e("  s_mov_b64 exec, -1")

def gen():
    e(".globl %s" % KN)
    e(".p2align 8")
    e(".type %s,@function" % KN)
    e("%s:" % KN)
    e("  s_cmp_ge_u32 s2, 256")
    e("  s_cbranch_scc1 L_end")
    stamp(0)
    e("  s_load_dwordx16 s[16:31], s[0:1], 0")
    e("  s_load_dwordx16 s[32:47], s[0:1], 64")
    e("  s_load_dwordx4 s[48:51], s[0:1], 128")
    e("  s_load_dwordx2 s[52:53], s[0:1], 144")
    if not NOPF:
        PFN = [int(a[6:]) for a in sys.argv if a.startswith("--pfn=")]
        if PFN:
            e("  s_cmp_ge_u32 s2, %d" % PFN[0])
            e("  s_cbranch_scc1 L_nopf")
        e("  s_getpc_b64 s[8:9]")
        e("L_pc:")
        e("  v_lshlrev_b32 v4, 4, v0")
        for c in range(NPF):
            e("  global_load_dwordx4 v[%d:%d], v4, s[8:9]" % (100 + 4 * c, 103 + 4 * c))
            if c < NPF - 1:
                e("  v_add_u32 v4, 8192, v4")
                e("  v_min_u32 v4, L_end-L_pc-16, v4")
        e("L_nopf:")
    e("  v_lshrrev_b32 v4, 6, v0")
    e("  v_and_b32 v1, 63, v0")
    e("  v_readfirstlane_b32 s3, v4")
    e("  v_and_b32 v2, 15, v1")
    e("  v_lshrrev_b32 v3, 4, v1")
    e("  s_and_b32 s4, s2, 7")
    e("  s_lshr_b32 s5, s2, 3")
    e("  s_and_b32 s8, s3, 2")
    e("  s_and_b32 s9, s3, 1")
    e("  s_lshl_b32 s10, s5, 6")
    e("  s_lshl_b32 s8, s8, 4")
    e("  s_add_u32 s10, s10, s8")
    e("  s_lshl_b32 s11, s4, 6")
    e("  s_lshl_b32 s9, s9, 5")
    e("  s_add_u32 s11, s11, s9")
    e("  s_lshl_b32 s12, s10, 10")
    e("  s_lshl_b32 s13, s11, 1")
    e("  s_add_u32 s12, s12, s13")
    e("  v_lshlrev_b32 v5, 13, v3")
    e("  v_lshl_add_u32 v5, v2, 2, v5")
    e("  v_add_u32 v5, s12, v5")
    e("  v_add_u32 v6, 4096, v5")
    e("  s_lshl_b32 s6, s4, 6")
    e("  s_lshl_b32 s8, s5, 1")
    e("  s_add_u32 s6, s6, s8")
    e("  s_lshr_b32 s8, s3, 2")
    e("  s_add_u32 s8, s8, s6")
    e("  s_and_b32 s9, s3, 3")
    e("  s_lshl_b32 s12, s8, 8")
    e("  s_lshl_b32 s13, s9, 6")
    e("  s_add_u32 s12, s12, s13")
    e("  v_and_b32 v8, 31, v1")
    e("  v_lshlrev_b32 v8, 1, v8")
    e("  v_add_u32 v8, s12, v8")
    e("  s_lshl_b32 s13, s8, 1")
    e("  v_mov_b32 v9, s13")
    e("  v_subrev_u32 v7, 3072, v5")
    e("  s_lshl_b32 s13, s11, 3")
    e("  v_lshlrev_b32 v4, 4, v2")
    e("  v_add_u32 v4, s13, v4")
    e("  s_waitcnt lgkmcnt(0)")
    e("  s_cmp_ge_u32 s3, 4")
    e("  s_cbranch_scc1 L_uload")
    e("  s_mov_b32 s12, s36")
    e("  s_and_b32 s13, s37, 0xffff")
    e("  s_mov_b32 s14, 0x200000")
    e("  s_mov_b32 s15, 0x00020000")
    e("  global_load_dwordx4 v[30:33], v4, s[40:41]")
    for h in range(3):
        e("  buffer_load_dword v%d, v7, s[12:15], 0 offen offset:%d" % (10 + h, 1024 * h))
    for r in range(8):
        e("  buffer_load_dword v%d, v%d, s[12:15], 0 offen offset:%d" % (13 + r, 5 + (r >> 2), 1024 * (r & 3)))
    for r in range(8):
        e("  global_load_dword v%d, v%d, s[38:39] offset:%d" % (21 + r, 5 + (r >> 2), 1024 * (r & 3)))
    e("  s_lshl_b32 s8, s2, 7")
    e("  s_add_u32 s8, s8, 0x%x" % WS_MB)
    e("  v_mov_b32 v242, s8")
    e("  v_mov_b32 v243, 0")
    e("  global_load_dwordx2 v[240:241], v242, s[52:53] sc1")
    e("  global_load_ushort v238, v9, s[30:31]")
    for k in range(6):
        e("  global_load_ushort v%d, v8, s[%d:%d]" % (232 + k, 18 + 2 * k, 19 + 2 * k))
    e("  s_branch L_common")
    e("L_uload:")
    for r in range(8):
        e("  global_load_dword v%d, v%d, s[16:17] offset:%d" % (10 + r, 5 + (r >> 2), 1024 * (r & 3)))
    e("  global_load_ushort v238, v9, s[30:31]")
    for k in range(6):
        e("  global_load_ushort v%d, v8, s[%d:%d]" % (232 + k, 18 + 2 * k, 19 + 2 * k))
    e("  s_lshl_b32 s8, s2, 3")
    e("  s_lshl_b32 s12, s9, 1")
    e("  s_add_u32 s35, s8, s12")
    e("  s_lshl_b32 s8, s35, 10")
    e("  v_lshlrev_b32 v241, 4, v1")
    e("  v_add_u32 v243, s8, v241")
    e("  s_lshr_b32 s8, s9, 1")
    e("  s_add_u32 s8, s8, s6")
    e("  s_lshl_b32 s8, s8, 12")
    e("  s_and_b32 s12, s9, 1")
    e("  s_lshl_b32 s12, s12, 11")
    e("  s_add_u32 s8, s8, s12")
    e("  v_add_u32 v242, s8, v241")
    for r in range(4):
        e("  v_mov_b32 v%d, 0" % (44 + r))
    e("  v_mov_b32 v42, %d" % L_CNT)
    e("  ds_write_b128 v42, v[44:47]")
    e("  ds_write_b128 v42, v[44:47] offset:16")
    e("  s_mul_i32 s12, s9, %d" % KRW)
    e("  s_add_u32 s12, s12, %d" % L_K)
    e("  v_add_u32 v42, s12, v241")
    e("  s_mov_b64 exec, 0xf")
    e("  ds_write_b128 v42, v[44:47]")
    e("  s_mov_b64 exec, -1")
    e("  s_or_b32 s12, s9, 1")
    e("  s_mul_i32 s12, s12, %d" % KRW)
    e("  s_and_b32 s13, s9, 1")
    e("  s_lshl_b32 s13, s13, 11")
    e("  s_add_u32 s12, s12, s13")
    e("  s_add_u32 s12, s12, %d" % (L_K + 64))
    e("  v_add_u32 v240, s12, v241")
    e("L_common:")
    e("  s_bfe_u32 s8, s3, 0x10001")
    e("  s_add_u32 s8, s8, s6")
    e("  s_and_b32 s9, s3, 1")
    e("  s_lshl_b32 s8, s8, 12")
    e("  s_lshl_b32 s9, s9, 21")
    e("  s_add_u32 s9, s9, s8")
    e("  s_add_u32 s36, s52, s9")
    e("  s_addc_u32 s37, s53, 0")
    e("  s_and_b32 s37, s37, 0xffff")
    e("  s_mov_b32 s38, 4096")
    e("  s_mov_b32 s39, 0x00020000")
    e("  v_lshlrev_b32 v202, 4, v1")
    e("  v_add_u32 v203, 16, v202")
    e("  s_mov_b32 %s, 0xffff0000" % S_M)
    e("  s_mov_b32 %s, 0xffff" % S_LO)
    e("  s_mov_b32 %s, 0x3f803f80" % S_ONES)
    e("  s_mov_b32 %s, 0x05040100" % S_P0)
    e("  s_mov_b32 %s, 0x07060302" % S_P1)
    e("  s_mul_i32 s8, s3, %d" % TTW)
    e("  s_add_u32 s8, s8, %d" % L_TT)
    e("  v_mul_u32_u24 v4, 160, v2")
    e("  v_lshlrev_b32 v42, 4, v3")
    e("  v_sub_u32 v4, v4, v42")
    e("  v_add3_u32 v4, v4, s8, 48")
    e("  v_lshrrev_b32 v42, 2, v1")
    e("  v_and_b32 v43, 3, v1")
    e("  v_mul_u32_u24 v5, 80, v42")
    e("  v_lshl_add_u32 v5, v43, 4, v5")
    e("  v_add_u32 v5, s8, v5")
    e("  s_lshl_b32 s8, s11, 12")
    e("  s_sub_u32 s9, 2016, s10")
    e("  s_lshl_b32 s9, s9, 1")
    e("  s_add_u32 s8, s8, s9")
    e("  s_cmp_lt_u32 s3, 4")
    e("  s_cselect_b32 s9, 0x%x, 0" % WS_KVT)
    e("  s_add_u32 s8, s8, s9")
    e("  v_lshlrev_b32 v42, 12, v42")
    e("  v_lshl_add_u32 v42, v43, 4, v42")
    e("  v_add_u32 v6, s8, v42")
    e("  v_add_u32 v7, 0x10000, v6")
    e("  v_mov_b32 v217, %d" % L_PT)
    e("  s_waitcnt lgkmcnt(0)")
    e("  s_barrier")
    if not NOWARM:
        e("  s_cmp_ge_u32 s3, 4")
        e("  s_cbranch_scc1 L_uphase")
        e("  s_mov_b64 exec, 0")
        for wv, lab in enumerate(["L_kv0", "L_kv1", "L_kv2", "L_kv3"]):
            e("  s_cmp_eq_u32 s3, %d" % wv)
            e("  s_cbranch_scc1 %s" % lab)
    e("L_warm_ret:")
    e("  s_mov_b64 exec, -1")
    e("  s_cmp_ge_u32 s3, 4")
    e("  s_cbranch_scc1 L_uphase")

    e("  s_setprio 2")
    e("  s_waitcnt vmcnt(16)")
    stamp(1)
    e("L_kv0:")
    WL = [34, 35, 36, 37]; WH = [38, 39, 40, 41]
    e("  v_and_b32 v34, %s, v30" % S_LO)
    e("  v_lshrrev_b32 v35, 16, v30")
    e("  v_and_b32 v36, %s, v31" % S_LO)
    e("  v_lshrrev_b32 v37, 16, v31")
    e("  v_lshlrev_b32 v38, 16, v32")
    e("  v_and_b32 v39, %s, v32" % S_M)
    e("  v_lshlrev_b32 v40, 16, v33")
    e("  v_and_b32 v41, %s, v33" % S_M)
    def kvblock(R, labs):
        rows = range(4 * R, 4 * R + 4)
        A, B, C, D, T = 44, 52, 60, 68, 76
        ix = lambda r, c: 2 * (r & 3) + c
        for r in rows:
            for c in range(2):
                dot2(A + ix(r, c), v(10 + r), v((WL, WH)[c][3]))
                dot2(B + ix(r, c), v(10 + r + 1), v((WL, WH)[c][2]))
        for r in rows:
            for c in range(2):
                dot2(C + ix(r, c), v(10 + r + 2), v((WL, WH)[c][1]))
                e("  v_cvt_pk_bf16_f32 v%d, v%d, v%d" % (T + ix(r, c), A + ix(r, c), B + ix(r, c)))
        for r in rows:
            for c in range(2):
                dot2(D + ix(r, c), v(10 + r + 3), v((WL, WH)[c][0]))
                dot2(A + ix(r, c), v(T + ix(r, c)), S_ONES)
        chunk_end()
        e("%s:" % labs[0])
        for r in rows:
            for c in range(2):
                e("  v_cvt_pk_bf16_f32 v%d, v%d, v%d" % (T + ix(r, c), A + ix(r, c), C + ix(r, c)))
        for r in rows:
            for c in range(2):
                dot2(A + ix(r, c), v(T + ix(r, c)), S_ONES)
        for r in rows:
            for c in range(2):
                e("  v_cvt_pk_bf16_f32 v%d, v%d, v%d" % (T + ix(r, c), A + ix(r, c), D + ix(r, c)))
        for r in rows:
            for c in range(2):
                dot2(A + ix(r, c), v(T + ix(r, c)), S_ONES)
        if R == 0:
            e("  s_cbranch_execz L_kvskipw")
            e("  s_waitcnt vmcnt(8)")
            e("L_kvskipw:")
        for r in rows:
            e("  v_and_b32 v%d, %s, v%d" % (B + ix(r, 0), S_LO, 21 + r))
            e("  v_and_b32 v%d, %s, v%d" % (B + ix(r, 1), S_M, 21 + r))
        for r in rows:
            e("  v_cvt_pk_bf16_f32 v%d, v%d, v%d" % (T + (r & 3), A + ix(r, 0), A + ix(r, 1)))
        for r in rows:
            for c in range(2):
                dot2(C + ix(r, c), v(T + (r & 3)), v(B + ix(r, c)))
        e("  s_nop 1")
        for r in rows:
            e("  v_cvt_pk_bf16_f32 v%d, v%d, v%d" % (88 + r, C + ix(r, 0), C + ix(r, 1)))
        chunk_end()
        if labs[1]:
            e("%s:" % labs[1])
    kvblock(0, ["L_kv1", "L_kv2"])
    kvblock(1, ["L_kv3", None])
    for m in range(4):
        e("  v_perm_b32 v%d, v%d, v%d, %s" % (44 + m, 88 + 6 - 2 * m, 88 + 7 - 2 * m, S_P0))
        e("  v_perm_b32 v%d, v%d, v%d, %s" % (48 + m, 88 + 6 - 2 * m, 88 + 7 - 2 * m, S_P1))
    e("  ds_write_b128 v4, v[44:47]")
    e("  ds_write_b128 v4, v[48:51] offset:80")
    e("  ds_read_b128 v[52:55], v5")
    e("  ds_read_b128 v[56:59], v5 offset:1280")
    e("  s_waitcnt vmcnt(7)")
    e("  v_add_u32 v240, 1, v240")
    e("  v_add_u32 v241, 8, v241")
    e("  v_mov_b32 v10, %d" % (L_CNT + 8))
    e("  ds_write_b32 v10, v241")
    e("  s_waitcnt lgkmcnt(2)")
    e("  global_store_dwordx4 v6, v[52:55], s[52:53] sc1")
    e("  s_waitcnt lgkmcnt(1)")
    e("  global_store_dwordx4 v7, v[56:59], s[52:53] sc1")
    e("  s_setprio 0")
    stamp(2)
    e("  s_mul_i32 s8, s3, %d" % KRW)
    e("  s_add_u32 s8, s8, %d" % (L_K + 4))
    e("  v_lshlrev_b32 v192, 2, v2")
    e("  v_lshl_add_u32 v192, v3, 4, v192")
    e("  v_add_u32 v192, s8, v192")
    for sp in range(1, 8):
        e("  v_add_u32 v%d, %d, v192" % (192 + sp, 512 * sp))
    e("  s_mul_i32 s8, s3, %d" % RW)
    e("  s_add_u32 s8, s8, %d" % L_U)
    e("  v_and_b32 v42, 1, v2")
    e("  v_lshrrev_b32 v43, 1, v2")
    e("  v_sub_u32 v42, 1, v42")
    e("  v_mul_u32_u24 v42, %d, v42" % CPY)
    e("  v_lshlrev_b32 v43, 6, v43")
    e("  v_sub_u32 v42, v42, v43")
    e("  v_lshl_add_u32 v42, v3, 4, v42")
    e("  v_add_u32 v42, 448, v42")
    e("  v_add_u32 v201, s8, v42")
    e("  v_lshlrev_b32 v202, 4, v1")
    e("  v_add_u32 v200, s8, v202")
    for r in range(160, 192):
        e("  v_mov_b32 v%d, 0" % r)
    e("  v_cmp_gt_u32 vcc, 28, v1")
    e("  s_and_saveexec_b64 s[18:19], vcc")
    e("  ds_write_b128 v200, v[160:163] offset:%d" % 4096)
    e("  ds_write_b128 v200, v[160:163] offset:%d" % (4096 + CPY))
    e("  s_mov_b64 exec, s[18:19]")
    e("  s_branch L_kgen")

    e("L_uphase:")
    e("  s_setprio 2")
    e("  s_waitcnt vmcnt(7)")
    stamp(1)
    for m in range(4):
        e("  v_perm_b32 v%d, v%d, v%d, %s" % (44 + m, 10 + 6 - 2 * m, 10 + 7 - 2 * m, S_P0))
        e("  v_perm_b32 v%d, v%d, v%d, %s" % (48 + m, 10 + 6 - 2 * m, 10 + 7 - 2 * m, S_P1))
    e("  ds_write_b128 v4, v[44:47]")
    e("  ds_write_b128 v4, v[48:51] offset:80")
    e("  ds_read_b128 v[52:55], v5")
    e("  ds_read_b128 v[56:59], v5 offset:1280")
    e("  s_waitcnt lgkmcnt(1)")
    e("  global_store_dwordx4 v6, v[52:55], s[52:53] sc1")
    e("  s_waitcnt lgkmcnt(0)")
    e("  global_store_dwordx4 v7, v[56:59], s[52:53] sc1")
    e("  global_load_dwordx4 v[124:127], v243, s[16:17]")
    e("  global_load_dwordx4 v[128:131], v243, s[16:17] offset:1024")
    e("  global_load_dwordx4 v[132:135], v241, s[46:47]")
    e("  global_load_dwordx4 v[244:247], v242, s[42:43]")
    e("  global_load_dwordx4 v[248:251], v242, s[42:43] offset:1024")
    e("  s_setprio 0")
    stamp(2)

    e("L_kgen:")
    for r in range(220, 232):
        e("  v_mov_b32 v%d, 0" % r)
    e("  v_lshrrev_b32 v42, 3, v2")
    e("  v_and_b32 v43, 7, v2")
    e("  v_lshl_add_u32 v42, v42, 7, v43")
    e("  v_cvt_f32_u32 v208, v42")
    e("  v_lshrrev_b32 v42, 2, v2")
    e("  v_and_b32 v43, 3, v2")
    e("  v_lshlrev_b32 v43, 1, v43")
    e("  v_lshl_add_u32 v42, v42, 7, v43")
    e("  v_add_u32 v42, 256, v42")
    e("  v_lshrrev_b32 v44, 1, v2")
    e("  v_and_b32 v43, 1, v2")
    e("  v_lshlrev_b32 v43, 2, v43")
    e("  v_cmp_gt_u32 vcc, 8, v2")
    e("  v_lshl_add_u32 v44, v44, 7, v43")
    e("  v_lshlrev_b32 v45, 7, v2")
    e("  v_cndmask_b32 v42, v44, v42, vcc")
    e("  v_cvt_f32_u32 v209, v42")
    e("  v_add_u32 v45, 1024, v45")
    e("  v_cvt_f32_u32 v210, v45")
    e("  v_lshlrev_b32 v42, 3, v2")
    e("  v_cvt_f32_u32 v211, v42")
    e("  s_mul_i32 s12, s3, 3072")
    e("  v_mov_b32 v46, s12")
    e("  v_lshrrev_b32 v42, 1, v3")
    e("  v_and_b32 v43, 1, v3")
    e("  v_lshlrev_b32 v43, 2, v43")
    e("  v_lshl_add_u32 v42, v42, 7, v43")
    e("  v_lshl_add_u32 v42, v2, 3, v42")
    e("  v_lshl_add_u32 v204, v42, 2, v46")
    e("  v_lshlrev_b32 v42, 6, v3")
    e("  v_add_u32 v42, 256, v42")
    e("  v_lshl_add_u32 v43, v2, 2, v42")
    e("  v_lshl_add_u32 v44, v2, 1, v42")
    e("  v_cmp_gt_u32 vcc, 2, v3")
    e("  v_add_u32 v45, 2, v43")
    e("  v_add_u32 v47, 32, v44")
    e("  v_cndmask_b32 v43, v44, v43, vcc")
    e("  v_cndmask_b32 v45, v47, v45, vcc")
    e("  v_lshl_add_u32 v205, v43, 2, v46")
    e("  v_lshl_add_u32 v206, v45, 2, v46")
    e("  v_lshlrev_b32 v42, 6, v3")
    e("  v_add3_u32 v42, v42, v2, 0")
    e("  v_add_u32 v42, 512, v42")
    e("  v_lshl_add_u32 v207, v42, 2, v46")
    e("  s_lshl_b32 s12, s3, 9")
    e("  s_add_u32 s12, s12, %d" % L_PT)
    e("  v_and_b32 v42, 31, v1")
    e("  v_lshlrev_b32 v42, 4, v42")
    e("  v_add_u32 v216, s12, v42")
    e("  v_lshlrev_b32 v42, 6, v3")
    e("  v_add_u32 v217, s12, v42")
    e("  v_lshrrev_b32 v41, 8, v0")
    e("  v_and_b32 v40, 255, v0")
    e("  v_mul_u32_u24 v42, 12288, v41")
    e("  v_lshlrev_b32 v43, 3, v40")
    e("  v_cmp_gt_u32 vcc, 16, v40")
    for ee in range(0, 8, 2):
        e("  v_add_u32 v44, %d, v43" % ee)
        e("  v_add_u32 v45, %d, v43" % (ee + 1))
        e("  v_cvt_f32_u32 v46, v44")
        e("  v_cvt_f32_u32 v47, v45")
        e("  v_cvt_pk_bf16_f32 v46, v46, v47")
        e("  v_and_b32 v47, %s, v46" % S_LO)
        e("  v_lshrrev_b32 v46, 16, v46")
        e("  v_subrev_u32 v47, 17024, v47")
        e("  v_subrev_u32 v46, 17024, v46")
        e("  v_cndmask_b32 v47, v47, v44, vcc")
        e("  v_cndmask_b32 v46, v46, v45, vcc")
        e("  v_lshl_add_u32 v%d, v47, 2, v42" % (116 + ee))
        e("  v_lshl_add_u32 v%d, v46, 2, v42" % (117 + ee))
    e("  v_mul_u32_u24 v44, %d, v41" % (2 * KRW))
    e("  v_lshl_add_u32 v44, v40, 4, v44")
    e("  v_add_u32 v219, %d, v44" % (L_K + 64))
    e("  s_waitcnt vmcnt(7)")
    e("  s_cmp_ge_u32 s3, 4")
    e("  s_cbranch_scc1 L_kp")
    e("  s_waitcnt vmcnt(2)")
    L2E = 1.4426950408889634
    L2E_HI = struct.unpack("<f", struct.pack("<I", f2u(L2E) & 0xFFFFFF00))[0]
    L2E_LO = L2E - L2E_HI
    e("L_kp:")
    for k in range(7):
        e("  v_lshlrev_b32 v%d, 16, v%d" % (232 + k, 232 + k))
    e("  v_mul_f32 v42, 0x%08x, v238" % f2u(L2E_HI))
    e("  v_mul_f32 v43, 0x%08x, v238" % f2u(L2E_LO * math.log(2.0)))
    e("  v_exp_f32 v42, v42")
    e("  s_nop 0")
    e("  v_fma_f32 v42, v42, v43, v42")
    e("  v_cvt_pk_bf16_f32 v42, v42, v42")
    e("  v_lshlrev_b32 v44, 16, v42")
    e("  v_mul_f32 v42, 0x%08x, v44" % f2u(L2E))
    e("  v_mul_f32 v43, 0x%08x, v44" % f2u(1.0 / (2.0 * math.pi)))
    e("  v_pk_mul_f32 v[232:233], v[232:233], v[42:43]")
    e("  v_pk_mul_f32 v[46:47], v[234:235], v[44:45] op_sel:[0,0] op_sel_hi:[1,0]")
    e("  v_pk_mul_f32 v[48:49], v[236:237], v[46:47] op_sel:[0,0] op_sel_hi:[0,1]")
    e("  v_pk_fma_f32 v[234:235], v[236:237], v[46:47], v[48:49] op_sel:[1,1,0] op_sel_hi:[1,0,1] neg_lo:[1,0,0]")
    e("  v_max_f32 v50, |v234|, |v235|")
    e("  s_nop 1")
    for sh in (1, 2, 4, 8):
        e("  v_max_f32_dpp v50, v50, v50 row_shr:%d row_mask:0xf bank_mask:0xf bound_ctrl:0" % sh)
        e("  s_nop 1")
    e("  v_max_f32_dpp v50, v50, v50 row_bcast:15 row_mask:0xa bank_mask:0xf")
    e("  s_nop 1")
    e("  v_readlane_b32 s12, v50, 31")
    e("  s_nop 1")
    e("  v_mov_b32 v50, s12")
    e("  v_frexp_exp_i32_f32 v50, v50")
    e("  v_sub_u32 v51, 0, v50")
    e("  v_ldexp_f32 v218, 1.0, v50")
    e("  v_ldexp_f32 v234, v234, v51")
    e("  v_ldexp_f32 v235, v235, v51")
    e("  ds_write_b128 v216, v[232:235]")
    e("  s_mov_b32 s59, 0")
    e("  s_mov_b32 s34, 0")
    e("  v_mov_b32 v48, %d" % L_CNT)
    e("  v_mov_b32 v49, 1")
    grp_off(50, 0)
    e("  s_waitcnt vmcnt(5)")
    e("  s_cmp_ge_u32 s3, 4")
    e("  s_cbranch_scc1 L_arr0")
    e("  s_waitcnt vmcnt(0)")
    e("L_arr0:")
    stamp(3)
    e("  s_mov_b64 exec, 1")
    e("  ds_add_rtn_u32 v52, v48, v49")
    e("  s_waitcnt lgkmcnt(0)")
    e("  v_cmp_eq_u32 vcc, 7, v52")
    e("  s_and_b64 exec, exec, vcc")
    e("  s_cbranch_execz L_arr1")
    e("  global_atomic_add v51, v50, v49, s[50:51] sc0 sc1")
    e("  s_mov_b32 s34, 1")
    e("L_arr1:")
    e("  s_mov_b64 exec, -1")
    e("L_kstart:")
    e("  ds_read_b128 v[40:43], v217")
    e("L_kloop:")
    A0, B0 = 100, 112
    for mm in range(4):
        P = 40 + 4 * (mm & 1)
        Z, CB = P, P + 2
        e("  s_waitcnt lgkmcnt(0)")
        if mm in (0, 2):
            e("L_kb%d:" % mm)
        nxt = (mm + 1) * 16 if mm < 3 else 256
        e("  ds_read_b128 %s, v217 offset:%d" % (quad(40 + 4 * ((mm + 1) & 1)), nxt))
        lam = [("v[208:209]", 0), ("v[208:209]", 1), ("v[210:211]", 0), ("v[210:211]", 1)]
        for a in range(4):
            l, h = lam[a]
            e("  v_pk_mul_f32 %s, %s, %s op_sel:[0,%d] op_sel_hi:[1,%d]" % (pair(92 + 2 * a), pair(Z), l, h, h))
        for a in range(4):
            e("  v_fract_f32 v%d, v%d" % (24 + a, 93 + 2 * a))
        for a in range(4):
            e("  v_exp_f32 v%d, v%d" % (16 + 2 * a, 92 + 2 * a))
            e("  v_cos_f32 v%d, v%d" % (8 + 2 * a, 24 + a))
            e("  v_sin_f32 v%d, v%d" % (9 + 2 * a, 24 + a))
        e("  s_nop 0")
        for a in range(4):
            e("  v_pk_mul_f32 %s, %s, %s op_sel:[0,0] op_sel_hi:[1,0]" % (pair(76 + 2 * a), pair(8 + 2 * a), pair(16 + 2 * a)))
        e("  v_pk_mul_f32 v[30:31], v[82:83], %s op_sel:[0,0] op_sel_hi:[0,1]" % pair(CB))
        for a in range(3):
            e("  v_cvt_pk_f16_f32 v%d, v%d, v%d" % (A0 + 4 * a + mm, 76 + 2 * a, 77 + 2 * a))
        e("  v_pk_fma_f32 v[30:31], v[82:83], %s, v[30:31] op_sel:[1,1,0] op_sel_hi:[1,0,1] neg_lo:[1,0,0] neg_hi:[1,0,1]" % pair(CB))
        e("  v_cvt_pk_f16_f32 v%d, v30, v31" % (B0 + mm))
        if mm in (1, 3):
            chunk_end()
        if mm == 1:
            e("  s_cmp_eq_u32 s34, 0")
            e("  s_cbranch_scc1 L_skip_arr2")
            e("  s_mov_b32 s34, 0")
            e("  s_waitcnt vmcnt(0)")
            e("  s_mov_b64 exec, 1")
            e("  v_and_b32 v51, 31, v51")
            e("  v_cmp_eq_u32 vcc, 31, v51")
            e("  s_and_b64 exec, exec, vcc")
            e("  s_cbranch_execz L_arr_done")
            e("  s_mov_b64 exec, 0xffffffff")
            e("  v_lshlrev_b32 v52, 10, v1")
            e("  s_lshl_b32 s8, s4, 7")
            e("  s_add_u32 s8, s8, 0x%x" % WS_MB)
            e("  v_add_u32 v52, s8, v52")
            e("  global_atomic_add v52, v49, s[52:53] sc1")
            e("L_arr_done:")
            e("  s_mov_b64 exec, -1")
            e("L_skip_arr2:")
    e("  v_add_u32 v217, 256, v217")
    e("  s_nop 0")
    for t in range(3):
        e("  v_mfma_f32_16x16x32_f16 %s, %s, %s, %s" % (quad(220 + 4 * t), quad(A0 + 4 * t), quad(B0), quad(220 + 4 * t)))
    e("  s_cmp_lg_u32 s59, 0")
    e("  s_cbranch_scc1 L_kdone")
    e("  s_mov_b32 s59, 1")
    e("  s_branch L_kloop")
    e("L_kdone:")
    stamp(4)
    for r in range(12):
        e("  v_mul_f32 v%d, v218, v%d" % (220 + r, 220 + r))
    e("  ds_write_b128 v204, v[220:223]")
    e("  ds_write_b64 v205, v[224:225]")
    e("  ds_write_b64 v206, v[226:227]")
    for r in range(4):
        e("  ds_write_b32 v207, v%d offset:%d" % (228 + r, 64 * r))
    e("  s_cmp_lt_u32 s3, 4")
    e("  s_cbranch_scc1 L_nossm")
    e("  s_waitcnt vmcnt(0)")
    e("  ds_write_b128 v240, v[244:247]")
    e("  ds_write_b128 v240, v[248:251] offset:1024")
    e("L_nossm:")
    e("  s_waitcnt lgkmcnt(0)")
    e("  s_barrier")
    for ee in range(8):
        e("  ds_read2st64_b32 %s, v%d offset0:0 offset1:12" % (pair(48 + 4 * ee), 116 + ee))
        e("  ds_read2st64_b32 %s, v%d offset0:24 offset1:36" % (pair(50 + 4 * ee), 116 + ee))
    e("  s_lshl_b32 s8, s6, 1")
    e("  v_mov_b32 v7, s8")
    e("  global_load_dword v252, v7, s[32:33]")
    e("  global_load_dword v253, v7, s[44:45]")
    for p in range(4):
        e("  s_waitcnt lgkmcnt(%d)" % (12 - 4 * p))
        for h in range(2):
            b = 48 + 8 * p + 4 * h
            e("  v_pk_add_f32 %s, %s, %s" % (pair(b), pair(b), pair(b + 2)))
        for h in range(2):
            b = 48 + 8 * p + 4 * h
            e("  v_add_f32 v%d, v%d, v%d" % (b, b, b + 1))
        e("  v_cvt_pk_bf16_f32 v%d, v%d, v%d" % (84 + p, 48 + 8 * p, 52 + 8 * p))
    e("  ds_write_b128 v219, v[84:87]")
    e("  s_cmp_ge_u32 s3, 4")
    e("  s_cbranch_scc1 L_upost")

    poll("L_pollT", 242, 240)
    if "--prio" in sys.argv:
        e("  s_setprio 3")
    stamp(5)
    for k in range(4):
        e("  buffer_load_dwordx4 %s, v202, s[36:39], 0 offen offset:%d sc1" % (quad(8 + 4 * k), 1024 * k))
    for k in range(4):
        e("  buffer_load_dword v%d, v203, s[36:39], 0 offen offset:%d sc1" % (24 + k, 1024 * k))
    e("  s_waitcnt lgkmcnt(0)")
    e("  s_barrier")
    def kreg(st, sp):
        return 32 + 64 * st + 4 * sp
    def ureg(st, bp):
        return 32 + 64 * st + 32 + 4 * bp
    def kloads(rc, n, st):
        ins = []
        for sp in range(n):
            ins.append("  ds_read2_b32 %s, v%d offset0:%d offset1:%d" % (pair(kreg(st, sp)), 192 + sp, 16 * rc, 16 * rc + 1))
            ins.append("  ds_read2_b32 %s, v%d offset0:%d offset1:%d" % (pair(kreg(st, sp) + 2), 192 + sp, 16 * rc + 2, 16 * rc + 3))
        return ins
    def uloads(rc, n, st):
        ins = []
        for bp in range(n):
            beta = 8 * bp - rc
            ins.append("  ds_read_b128 %s, v201 offset:%d" % (quad(ureg(st, bp)), 3584 - 64 * beta))
        return ins
    stages = [(0, rc) for rc in range(8)] + ([(1, rc) for rc in range(8)] if TA < 8 else [])
    def nfr(ps):
        return TA if ps == 0 else 8
    for x in kloads(0, TA, 0):
        e(x)
    for k in range(4):
        b = 8 + 4 * k
        e("  s_waitcnt vmcnt(%d)" % (3 - k))
        e("  ds_write_b128 v200, %s offset:%d" % (quad(b), 1024 * k))
        e("  v_alignbit_b32 v28, v%d, v%d, 16" % (b + 1, b))
        e("  v_alignbit_b32 v29, v%d, v%d, 16" % (b + 2, b + 1))
        e("  v_alignbit_b32 v30, v%d, v%d, 16" % (b + 3, b + 2))
        e("  v_alignbit_b32 v31, v%d, v%d, 16" % (24 + k, b + 3))
        e("  ds_write_b128 v200, v[28:31] offset:%d" % (1024 * k + CPY))
        e("  s_nop 1")
    stamp(6)
    for x in uloads(0, TA, 0):
        e(x)
    e("  s_lshl_b32 s8, s3, 12")
    e("  s_add_u32 s8, s8, %d" % L_Y)
    e("  v_lshlrev_b32 v5, 7, v3")
    e("  v_lshl_add_u32 v5, v2, 2, v5")
    e("  v_add_u32 v5, s8, v5")
    e("  v_mov_b32 v6, %d" % (L_CNT + 4))
    e("  v_mov_b32 v7, 1")
    def ywrite(tiles):
        ins = []
        for t in tiles:
            a = 160 + 4 * t
            ins.append("  v_cvt_pk_bf16_f32 v%d, v%d, v%d" % (8 + 2 * t, a, a + 1))
            ins.append("  v_cvt_pk_bf16_f32 v%d, v%d, v%d" % (9 + 2 * t, a + 2, a + 3))
            ins.append("  ds_write_b32 v5, v%d offset:%d" % (8 + 2 * t, 512 * t))
            ins.append("  ds_write_b32 v5, v%d offset:%d" % (9 + 2 * t, 512 * t + 64))
        return ins
    for si, (ps, rc) in enumerate(stages):
        st = si & 1
        e("  s_waitcnt lgkmcnt(0)")
        mf = []
        for sp in range(8):
            for bp in range(8 - sp):
                t = sp + bp
                if (t < TA) == (ps == 0):
                    mf.append("  v_mfma_f32_16x16x32_bf16 %s, %s, %s, %s" % (quad(160 + 4 * t), quad(ureg(st, bp)), quad(kreg(st, sp)), quad(160 + 4 * t)))
        nl = []
        if si + 1 < len(stages):
            ps2, rc2 = stages[si + 1]
            n = nfr(ps2)
            kl, ul = kloads(rc2, n, st ^ 1), uloads(rc2, n, st ^ 1)
            for i in range(n):
                nl += [kl[2 * i], kl[2 * i + 1], ul[i]]
        extra = []
        if (ps, rc) == (1, 0):
            extra = ywrite(range(TA))
        per = max(1, -(-len(nl) // len(mf)))
        li = 0
        for i, x in enumerate(mf):
            e(x)
            for _ in range(per):
                if li < len(nl):
                    e(nl[li]); li += 1
            if i >= 4 and extra:
                for _ in range(2):
                    if extra:
                        e(extra.pop(0))
        while li < len(nl):
            e(nl[li]); li += 1
        for x in extra:
            e(x)
        if (ps, rc) == (1, 1):
            pass
        if (ps, rc) == (1, 0):
            L.append("@PUBLISH")
    if TA < 8:
        idx = L.index("@PUBLISH")
        assert L[idx + 1].strip() == "s_waitcnt lgkmcnt(0)"
        L[idx:idx + 2] = ["  s_waitcnt lgkmcnt(0)", "  s_mov_b64 exec, 1", "  ds_add_u32 v6, v7", "  s_mov_b64 exec, -1"]
    e("  s_nop 7")
    stamp(7)
    for x in ywrite(range(TA, 8) if TA < 8 else range(8)):
        e(x)
    e("  s_waitcnt vmcnt(0)")
    dsel()
    e("  s_branch L_final")

    e("L_upost:")
    e("  s_waitcnt lgkmcnt(0)")
    e("  s_barrier")
    stamp(5)
    gate_block()
    e("  v_mov_b32 v48, %d" % (L_CNT + 16))
    e("  v_mov_b32 v49, 1")
    grp_off(50, 4)
    e("  s_waitcnt vmcnt(0)")
    e("  s_mov_b64 exec, 1")
    e("  ds_add_rtn_u32 v52, v48, v49")
    e("  s_waitcnt lgkmcnt(0)")
    e("  v_cmp_eq_u32 vcc, 3, v52")
    e("  s_and_b64 exec, exec, vcc")
    e("  s_cbranch_execz L_garr_done")
    e("  global_atomic_add v53, v50, v49, s[50:51] sc0 sc1")
    e("  s_waitcnt vmcnt(0)")
    e("  v_and_b32 v53, 31, v53")
    e("  v_cmp_eq_u32 vcc, 31, v53")
    e("  s_and_b64 exec, exec, vcc")
    e("  s_cbranch_execz L_garr_done")
    e("  s_mov_b64 exec, -1")
    e("  v_lshlrev_b32 v52, 7, v1")
    e("  v_add_u32 v52, 0x%x, v52" % (WS_MB + 4))
    for c in range(4):
        e("  global_atomic_add v52, v49, s[52:53] sc1")
        if c < 3:
            e("  v_add_u32 v52, 8192, v52")
    e("L_garr_done:")
    e("  s_mov_b64 exec, -1")
    e("  s_cmp_lg_u32 s3, 4")
    e("  s_cbranch_scc1 L_uwait")
    e("  v_mov_b32 v10, %d" % (L_CNT + 8))
    e("  ds_read_b32 v11, v10")
    e("  s_lshl_b32 s8, s2, 7")
    e("  s_add_u32 s8, s8, 0x%x" % (WS_MB + 4))
    e("  v_mov_b32 v10, s8")
    e("  s_waitcnt lgkmcnt(0)")
    poll("L_pollG", 10, 11)
    e("  v_lshlrev_b32 v40, 4, v1")
    e("  v_add_u32 v41, 0x%x, v40" % WS_G)
    e("  v_add_u32 v42, 4096, v41")
    for c in range(8):
        e("  global_load_dwordx4 %s, v%d, s[52:53] offset:%d sc1" % (quad(72 + 4 * c), 41 + (c >> 2), 1024 * (c & 3)))
    for c in range(8):
        e("  s_waitcnt vmcnt(%d)" % (7 - c))
        e("  ds_write_b128 v40, %s offset:%d" % (quad(72 + 4 * c), L_G + 1024 * c))
    e("  v_mov_b32 v10, %d" % (L_CNT + 12))
    e("  v_mov_b32 v11, 1")
    e("  s_waitcnt lgkmcnt(0)")
    e("  ds_write_b32 v10, v11")
    stamp(6)
    e("L_uwait:")
    e("  s_waitcnt vmcnt(0)")
    dsel()
    if TA < 8:
        e("  v_mov_b32 v10, %d" % L_CNT)
        e("  s_mov_b32 s58, 0")
        e("L_lspin:")
        e("  ds_read_b128 v[12:15], v10")
        e("  s_waitcnt lgkmcnt(0)")
        e("  v_lshl_add_u32 v12, v15, 4, v13")
        e("  v_cmp_ne_u32 vcc, 20, v12")
        e("  s_add_u32 s58, s58, 1")
        e("  s_cmp_ge_u32 s58, %d" % (SPIN_MAX * 4))
        e("  s_cbranch_scc1 L_lspin_done")
        e("  s_cbranch_vccz L_lspin_done")
        e("  s_sleep 4")
        e("  s_branch L_lspin")
        e("L_lspin_done:")
        e("  v_subrev_u32 v254, 256, v0")
        if TA == 4:
            combine(4, 254, 0)
        else:
            raise SystemExit("TA != 4 unsupported in combine split for now")
    stamp(7)

    e("L_final:")
    e("  s_waitcnt lgkmcnt(0)")
    e("  s_barrier")
    stamp(8)
    if TA < 8:
        combine(2, 0, 1024)
    else:
        combine(4, 0, 0)
    stamp(9)
    stamp_flush(10)
    e("L_end:")
    e("  s_endpgm")

def main():
    e(HEADER.rstrip("\n"))
    e("; @launch grid=(256,1,1) block=(512,1,1) lds=%d" % LDS_TOTAL)
    e('.amdgcn_target "amdgcn-amd-amdhsa--gfx950"')
    e(".text")
    gen()
    e('.section .rodata,"a"')
    e(".p2align 6")
    e(".amdhsa_kernel %s" % KN)
    e("  .amdhsa_next_free_vgpr 256")
    e("  .amdhsa_next_free_sgpr 102")
    e("  .amdhsa_accum_offset 256")
    e("  .amdhsa_group_segment_fixed_size 0")
    e("  .amdhsa_kernarg_size 152")
    e("  .amdhsa_user_sgpr_count 2")
    e("  .amdhsa_user_sgpr_kernarg_segment_ptr 1")
    e("  .amdhsa_system_sgpr_workgroup_id_x 1")
    e(".end_amdhsa_kernel")
    args = [a for a in sys.argv[1:] if not a.startswith("--")]
    open(args[0] if args else OUT, "w").write("\n".join(L) + "\n")

main()
```
